```python
import torch

def _softmax(x, axis=-1):
    return torch.softmax(x, dim=axis)
def _gelu(x):
    return torch.nn.functional.gelu(x, approximate="tanh")
def _silu(x):
    return torch.nn.functional.silu(x)
def _sigmoid(x):
    return torch.sigmoid(x)
def _layernorm(x, axis=-1, eps=1e-5):
    m = x.mean(dim=axis, keepdim=True)
    v = x.var(dim=axis, keepdim=True, unbiased=False)
    return (x - m) / torch.sqrt(v + eps)
def _scatter_add(tgt, idx, src, axis=0):
    return tgt.clone().index_add_(axis, idx, src)
def _segment_sum(src, seg, n):
    out = torch.zeros((n,) + src.shape[1:], dtype=src.dtype)
    return out.index_add_(0, seg, src)
def _pad(x, pw):
    flat = tuple(v for pair in reversed(pw) for v in pair)
    return torch.nn.functional.pad(x, flat)

kernel_name = 'gated_mix__mha_block__glu_gated_bilinear__prompt'

def setup_inputs():

    _w = (lambda a: (lambda t: t.to(torch.bfloat16) if t.is_floating_point() else t)(torch.as_tensor(a)))
    def _A_setup():
        B, S, D, H = 1, 2048, 576, 32
        return {
            "x": _w((lambda *s: torch.randn(*s, dtype=torch.bfloat16) * 0.05)(B, S, D)),
            "wqkv": _w((lambda *s: torch.randn(*s, dtype=torch.bfloat16) * 0.8)(D, 3 * D)),
            "wo": _w((lambda *s: torch.randn(*s, dtype=torch.bfloat16) * 0.05)(D, D)),
        }
    _A_in = _A_setup()

    def _B_setup():
        B, S, D, F = 1, 2048, 576, 4608
        return {
            "x": _w((lambda *s: torch.randn(*s, dtype=torch.bfloat16) * 0.05)(B, S, D)),
            "w_gate": _w((lambda *s: torch.randn(*s, dtype=torch.bfloat16) * 3.2)(D, F) * (D ** -0.5)),
            "w_up": _w((lambda *s: torch.randn(*s, dtype=torch.bfloat16) * 3.2)(D, F) * (D ** -0.5)),
            "w_down": _w((lambda *s: torch.randn(*s, dtype=torch.bfloat16) * 3.2)(F, D) * (F ** -0.5)),
        }
    _B_in = _B_setup()

    return {
        "A_x": _A_in["x"],
        "A_wqkv": _A_in["wqkv"],
        "A_wo": _A_in["wo"],
        "B_x": _B_in["x"],
        "B_w_gate": _B_in["w_gate"],
        "B_w_up": _B_in["w_up"],
        "B_w_down": _B_in["w_down"],
        "gate_w": _w((lambda *s: torch.randn(*s, dtype=torch.bfloat16) * 0.05)(576) * 16.0),
    }

def reference(A_x, A_wqkv, A_wo, B_x, B_w_gate, B_w_up, B_w_down, gate_w):
    def _A_ref(x, wqkv, wo):
        B, S, D = x.shape
        H = 32
        Dh = D // H
        qkv = (lambda x, *d: x.permute(*d))((x @ wqkv).reshape(B, S, 3, H, Dh), 2, 0, 3, 1, 4)
        q, k, v = qkv[0], qkv[1], qkv[2]
        scores = torch.einsum("bhqd,bhkd->bhqk", q, k) * (Dh ** -0.5)
        p = _softmax(scores, axis=-1)
        o = torch.einsum("bhqk,bhkd->bhqd", p, v)
        return (lambda x, *d: x.permute(*d))(o, 0, 2, 1, 3).reshape(B, S, D) @ wo

    def _B_ref(x, w_gate, w_up, w_down):
        g = torch.einsum("bsd,df->bsf", x, w_gate)
        u = torch.einsum("bsd,df->bsf", x, w_up)
        h = g * u
        return torch.einsum("bsf,fd->bsd", h, w_down)

    x = A_x
    g = _sigmoid((x * gate_w).sum(-1, keepdims=True))
    a = _A_ref(x, A_wqkv, A_wo)
    b = _B_ref(x, B_w_gate, B_w_up, B_w_down)
    return g * a + (1 - g) * b
```

```python
class Asm:
    def __init__(self):
        self.lines = []
    def __call__(self, s=""):
        for ln in s.split("\n"):
            self.lines.append(("    " + ln.strip()) if ln.strip() and not ln.strip().endswith(":") else ln.strip())
    def label(self, name):
        self.lines.append(name + ":")
    def comment(self, s):
        self.lines.append("    ; " + s)
    def text(self):
        return "\n".join(self.lines) + "\n"

def vr(b, n=1):
    return f"v{b}" if n == 1 else f"v[{b}:{b+n-1}]"
def sr(b, n=1):
    return f"s{b}" if n == 1 else f"s[{b}:{b+n-1}]"

def srd(a, d, base_lo, size, off=0):
    if off:
        a(f"s_add_u32 s{d}, s{base_lo}, {off}")
        a(f"s_addc_u32 s{d+1}, s{base_lo+1}, 0")
    else:
        a(f"s_mov_b32 s{d}, s{base_lo}")
        a(f"s_mov_b32 s{d+1}, s{base_lo+1}")
    a(f"s_mov_b32 s{d+2}, {size}")
    a(f"s_mov_b32 s{d+3}, 0x00020000")

def kernel_desc(name, vgpr, sgpr=102):
    acc = (vgpr + 3) // 4 * 4
    return f""".section .rodata,"a"
.p2align 6
.amdhsa_kernel {name}
  .amdhsa_next_free_vgpr {vgpr}
  .amdhsa_next_free_sgpr {sgpr}
  .amdhsa_accum_offset {acc}
  .amdhsa_group_segment_fixed_size 0
  .amdhsa_kernarg_size 88
  .amdhsa_user_sgpr_count 2
  .amdhsa_user_sgpr_kernarg_segment_ptr 1
  .amdhsa_system_sgpr_workgroup_id_x 1
.end_amdhsa_kernel
.text
"""
```

```python
from asmlib import *
S, D, H, DH = 2048, 576, 32, 18
WS_QM, WS_QT, WS_KM, WS_KT, WS_VT = 0x0, 0x200000, 0x240000, 0x440000, 0x480000
WS_H, WS_O = 0x800000, 0x1A00000
L_KT = 65536
L_V = 73728
VROW = 4096 + 16
L_ONES = L_V + 18 * VROW
L_ZERO = L_ONES + 64
L_TOTAL = L_ZERO + 64
THR = 8.0

QA, QAT, QB, QBT = 8, 12, 16, 20
KM = [24, 32]; KT = [28, 36]
VF = [40, 48]
SS = {"a": 64, "b": 80}
NM = {"a": 96, "b": 112}
OO = {"a": 128, "b": 144}
PP = {"a": 160, "b": 168}
T0 = 176

def qk(a, x, par):
    q, qt = (QA, QAT) if x == "a" else (QB, QBT)
    s, nm = SS[x], NM[x]
    a(f"v_mfma_f32_32x32x16_bf16 {vr(s,16)}, {vr(KM[par],4)}, {vr(q,4)}, {vr(nm,16)}")
    a(f"v_mfma_f32_32x32x16_bf16 {vr(s,16)}, {vr(KT[par],4)}, {vr(qt,4)}, {vr(s,16)}")

def pv(a, x, par):
    o, p = OO[x], PP[x]
    a(f"v_mfma_f32_32x32x16_bf16 {vr(o,16)}, {vr(VF[par],4)}, {vr(p,4)}, {vr(o,16)}")
    a(f"v_mfma_f32_32x32x16_bf16 {vr(o,16)}, {vr(VF[par]+4,4)}, {vr(p+4,4)}, {vr(o,16)}")

def reads(a, par):
    a(f"ds_read_b128 {vr(KM[par],4)}, v2")
    a(f"ds_read_b32 v{KT[par]}, v3")
    a(f"ds_read_b128 {vr(VF[par],4)}, v5")
    a(f"ds_read_b128 {vr(VF[par]+4,4)}, v5 offset:32")
    a("v_add_u32 v2, 512, v2")
    a("v_add_u32 v3, v4, v3")
    a("v_add_u32 v5, v6, v5")

def maxtree(a, s, dst):
    a(f"v_max3_f32 v{dst}, v{s}, v{s+1}, v{s+2}")
    for i in range(3, 15, 2):
        a(f"v_max3_f32 v{dst}, v{dst}, v{s+i}, v{s+i+1}")
    a(f"v_max_f32 v{dst}, v{dst}, v{s+15}")

def softmax(a, x, tag, first, cold):
    s, nm, o, p = SS[x], NM[x], OO[x], PP[x]
    t = T0
    maxtree(a, s, t)
    if first:
        rescale_body(a, x, True)
    else:
        a(f"v_cmp_lt_f32 vcc, s35, v{t}")
        a("s_nop 1")
        a(f"s_cbranch_vccnz resc_{tag}")
        a.label(f"back_{tag}")
        cold.append((x, tag))
    for i in range(16):
        a(f"v_exp_f32 v{s+i}, v{s+i}")
    for i in range(8):
        a(f"v_cvt_pk_bf16_f32 v{p+i}, v{s+2*i}, v{s+2*i+1}")

def rescale_body(a, x, first):
    s, nm, o = SS[x], NM[x], OO[x]
    t = T0
    a(f"v_mov_b32 v{t+1}, v{t}")
    a(f"v_mov_b32 v{t+2}, v{t}")
    a("s_nop 1")
    a(f"v_permlane32_swap_b32 v{t+1}, v{t+2}")
    a("s_nop 1")
    a(f"v_max_f32 v{t}, v{t+1}, v{t+2}")
    if not first:
        a(f"v_max_f32 v{t}, 0, v{t}")
        a(f"v_sub_f32 v{t+1}, 0, v{t}")
        a(f"v_exp_f32 v{t+1}, v{t+1}")
        a("s_nop 0")
        for r in range(12):
            a(f"v_mul_f32 v{o+r}, v{o+r}, v{t+1}")
    for i in range(16):
        a(f"v_sub_f32 v{s+i}, v{s+i}, v{t}")
    for i in range(16):
        a(f"v_sub_f32 v{nm+i}, v{nm+i}, v{t}")

def tile(a, par, tag, first, cold):
    reads(a, par ^ 1)
    softmax(a, "a", tag + "a", first, cold)
    a("s_waitcnt lgkmcnt(2)")
    qk(a, "a", par ^ 1)
    pv(a, "a", par)
    softmax(a, "b", tag + "b", first, cold)
    a("s_nop 1")
    qk(a, "b", par ^ 1)
    pv(a, "b", par)

def gen_attn(a):
    name = "attn_kernel"
    a(f".globl {name}")
    a(".p2align 8")
    a(f".type {name},@function")
    a.label(name)
    NWG = 256
    a(f"s_cmp_ge_u32 s2, {NWG}")
    a("s_cbranch_scc1 attn_done")
    a("s_load_dwordx2 s[44:45], s[0:1], 80")
    a("v_lshrrev_b32 v1, 6, v0")
    a("s_nop 0")
    a("v_readfirstlane_b32 s24, v1")
    a("v_and_b32 v0, 63, v0")
    a("s_and_b32 s30, s2, 7")
    a("s_lshl_b32 s30, s30, 5")
    a("s_lshr_b32 s31, s2, 3")
    a("s_add_u32 s30, s30, s31")
    a("s_and_b32 s31, s30, 7")
    a("s_lshr_b32 s30, s30, 3")
    a("s_waitcnt lgkmcnt(0)")
    srd(a, 8, 44, WS_H)
    srd(a, 12, 44, S * D * 2, WS_O)
    a(f"s_mov_b32 s35, {THR}")
    a("v_lshlrev_b32 v1, 4, v0")
    a("s_lshl_b32 s25, s24, 10")
    a("s_lshl_b32 s26, s30, 16")
    a(f"s_add_u32 s26, s26, {WS_KM}")
    a("s_add_u32 s26, s26, s25")
    for j in range(16):
        a(f"s_add_u32 m0, s25, {j*4096}")
        a("s_nop 0")
        a("buffer_load_dwordx4 v1, s[8:11], s26 offen lds")
        a("s_add_u32 s26, s26, 4096")
    a("s_lshl_b32 s26, s30, 13")
    a(f"s_add_u32 s26, s26, {WS_KT}")
    a("s_add_u32 s26, s26, s25")
    for j in range(2):
        a(f"s_add_u32 m0, s25, {L_KT + j*4096}")
        a("s_nop 0")
        a("buffer_load_dwordx4 v1, s[8:11], s26 offen lds")
        a("s_add_u32 s26, s26, 4096")
    a(f"s_mul_i32 s26, s30, {18*4096}")
    a(f"s_add_u32 s26, s26, {WS_VT}")
    a("s_add_u32 s26, s26, s25")
    for d in range(18):
        a(f"s_add_u32 m0, s25, {L_V + d*VROW}")
        a("s_nop 0")
        a("buffer_load_dwordx4 v1, s[8:11], s26 offen lds")
        a("s_add_u32 s26, s26, 4096")
    a("v_lshlrev_b32 v2, 2, v0")
    a(f"v_add_u32 v2, {L_ONES}, v2")
    a("v_mov_b32 v3, 0x3f803f80")
    a("v_cmp_gt_u32 vcc, 16, v0")
    a("s_nop 1")
    a("v_cndmask_b32 v3, 0, v3, vcc")
    a("v_cmp_gt_u32 vcc, 32, v0")
    a("s_and_saveexec_b64 s[36:37], vcc")
    a("ds_write_b32 v2, v3")
    a("s_mov_b64 exec, s[36:37]")
    a("v_and_b32 v2, 31, v0")
    a("v_lshrrev_b32 v3, 5, v0")
    a("s_lshl_b32 s26, s31, 8")
    a("s_lshl_b32 s27, s24, 6")
    a("s_add_u32 s26, s26, s27")
    a("v_add_u32 v4, s26, v2")
    a("s_lshl_b32 s27, s30, 1")
    a("v_add_u32 v5, s27, v3")
    a("v_lshlrev_b32 v5, 11, v5")
    a("v_add_u32 v5, v5, v4")
    a("v_lshlrev_b32 v5, 4, v5")
    a(f"buffer_load_dwordx4 {vr(QA,4)}, v5, s[8:11], 0 offen")
    a(f"buffer_load_dwordx4 {vr(QB,4)}, v5, s[8:11], 0 offen offset:512")
    a("s_lshl_b32 s27, s30, 11")
    a("v_add_u32 v5, s27, v4")
    a("v_lshlrev_b32 v5, 2, v5")
    a(f"v_add_u32 v5, {WS_QT}, v5")
    a("v_cmp_lt_u32 vcc, 31, v0")
    a("v_mov_b32 v6, 0x7f000000")
    a("s_nop 1")
    a("v_cndmask_b32 v5, v5, v6, vcc")
    a(f"buffer_load_dword v{QAT}, v5, s[8:11], 0 offen")
    a(f"buffer_load_dword v{QBT}, v5, s[8:11], 0 offen offset:128")
    for r in (QAT+1, QAT+2, QAT+3, QBT+1, QBT+2, QBT+3, KT[0]+1, KT[0]+2, KT[0]+3, KT[1]+1, KT[1]+2, KT[1]+3):
        a(f"v_mov_b32 v{r}, 0")
    for r in range(96, 160):
        a(f"v_mov_b32 v{r}, 0")
    a("v_mov_b32 v7, v4")
    a("v_lshlrev_b32 v4, 15, v3")
    a("v_lshl_add_u32 v2, v2, 4, v4")
    a("v_and_b32 v4, 31, v0")
    a("v_lshlrev_b32 v4, 2, v4")
    a(f"v_add_u32 v4, {L_KT}, v4")
    a(f"v_mov_b32 v5, {L_ZERO}")
    a("v_mov_b32 v6, 128")
    a("v_cndmask_b32 v3, v4, v5, vcc")
    a("v_cndmask_b32 v4, v6, 0, vcc")
    a("v_and_b32 v5, 31, v0")
    a(f"s_mov_b32 s27, {VROW}")
    a("v_mul_lo_u32 v6, v5, s27")
    a("v_lshrrev_b32 v1, 5, v0")
    a("v_lshl_add_u32 v6, v1, 4, v6")
    a(f"v_add_u32 v6, {L_V}, v6")
    a(f"v_mov_b32 v1, {L_ZERO}")
    a(f"v_mov_b32 v{T0}, {L_ONES}")
    a("v_cmp_eq_u32 vcc, 18, v5")
    a("s_nop 1")
    a(f"v_cndmask_b32 v1, v1, v{T0}, vcc")
    a("v_cmp_gt_u32 vcc, 18, v5")
    a(f"v_mov_b32 v{T0}, 64")
    a("s_nop 1")
    a("v_cndmask_b32 v5, v1, v6, vcc")
    a(f"v_cndmask_b32 v6, 0, v{T0}, vcc")
    a("s_waitcnt vmcnt(0) lgkmcnt(0)")
    a("s_barrier")
    reads(a, 0)
    a("s_waitcnt lgkmcnt(0)")
    qk(a, "a", 0)
    qk(a, "b", 0)
    a("s_nop 15")
    cold = []
    tile(a, 0, "t0", True, cold)
    a("s_mov_b32 s28, 0")
    a.label("attn_loop")
    tile(a, 1, "l1", False, cold)
    tile(a, 0, "l0", False, cold)
    a("s_add_u32 s28, s28, 1")
    a("s_cmp_lt_u32 s28, 31")
    a("s_cbranch_scc1 attn_loop")
    tile(a, 1, "t63", False, cold)
    a("s_nop 15")
    a("s_nop 7")
    a("v_lshrrev_b32 v1, 5, v0")
    a(f"s_mov_b32 s27, {D*2}")
    a("v_mul_lo_u32 v2, v7, s27")
    a("v_lshl_add_u32 v2, v1, 3, v2")
    a("s_mul_i32 s27, s30, 36")
    a("v_cmp_lt_u32 vcc, 31, v0")
    a("v_mov_b32 v4, 0x7f000000")
    a("s_nop 1")
    a("v_cndmask_b32 v3, v2, v4, vcc")
    for x, qoff in (("a", 0), ("b", 32)):
        o = OO[x]
        t = T0
        a(f"v_mov_b32 v{t}, v{o+10}")
        a(f"v_mov_b32 v{t+1}, v{o+10}")
        a("s_nop 1")
        a(f"v_permlane32_swap_b32 v{t}, v{t+1}")
        a("s_nop 1")
        a(f"v_rcp_f32 v{t}, v{t}")
        a("s_nop 0")
        for r in range(10):
            a(f"v_mul_f32 v{o+r}, v{o+r}, v{t}")
        for i in range(5):
            a(f"v_cvt_pk_bf16_f32 v{t+2+i}, v{o+2*i}, v{o+2*i+1}")
        a(f"buffer_store_dwordx2 {vr(t+2,2)}, v2, s[12:15], s27 offen offset:{qoff*D*2 % 4096 if False else 0}")
        a(f"buffer_store_dwordx2 {vr(t+4,2)}, v2, s[12:15], s27 offen offset:16")
        a(f"buffer_store_dword v{t+6}, v3, s[12:15], s27 offen offset:32")
        if x == "a":
            a(f"s_add_u32 s27, s27, {32*D*2}")
            a("s_nop 1")
    a("s_endpgm")
    for (x, tag) in cold:
        a.label(f"resc_{tag}")
        rescale_body(a, x, False)
        a(f"s_branch back_{tag}")
    a.label("attn_done")
    a("s_endpgm")
    return name, NWG, L_TOTAL, 192
```

```python
from asmlib import *
from gemm import *
S, D, H, DH, F = 2048, 576, 32, 18, 4608
WS_H, WS_O = 0x800000, 0x1A00000

def gen_final(a):
    name = "final_kernel"
    a(f".globl {name}")
    a(".p2align 8")
    a(f".type {name},@function")
    a.label(name)
    cfg = GemmCfg()
    cfg.TM, cfg.MT, cfg.NTW, cfg.NSUB = 64, 2, 3, 2
    cfg.half_last_sub = True
    cfg.lda, cfg.ldb = D * 2, D * 2
    cfg.vA, cfg.vB = 6, 14
    cfg.fA, cfg.fW0, cfg.fW1 = 20, 28, 36
    cfg.acc = 40
    APK = 64
    cfg.sub_srd = [12, 12]
    cfg.sub_soff = [27, 28]
    cfg.phases = [[(0, 0, 0), (1, 0, 1)], [(2, 0, 2)]]
    cfg.swap = lambda g: True
    LG = NSTAGE * stage_bytes(cfg)
    NWG = 32 * 6
    a(f"s_cmp_ge_u32 s2, {NWG}")
    a("s_cbranch_scc1 fin_done")
    a("s_load_dwordx2 s[4:5], s[0:1], 0")
    a("s_load_dwordx2 s[6:7], s[0:1], 16")
    a("s_load_dwordx4 s[40:43], s[0:1], 48")
    a("s_load_dwordx2 s[46:47], s[0:1], 64")
    a("s_load_dwordx2 s[44:45], s[0:1], 80")
    gemm_prologue_ids(a, cfg)
    a("s_and_b32 s30, s2, 7")
    a("s_mul_i32 s30, s30, 24")
    a("s_lshr_b32 s31, s2, 3")
    a("s_add_u32 s30, s30, s31")
    a("s_lshr_b32 s31, s30, 5")
    a("s_and_b32 s30, s30, 31")
    a("s_waitcnt lgkmcnt(0)")
    srd(a, 8, 44, S * D * 2, WS_O)
    srd(a, 12, 6, D * D * 2)
    srd(a, 16, 44, S * F * 2, WS_H)
    srd(a, 20, 40, F * D * 2)
    srd(a, 48, 4, S * D * 2)
    srd(a, 52, 42, D * 2)
    srd(a, 56, 46, S * D * 2)
    cfg.lda = F * 2
    gemm_setup_addrs(a, cfg)
    a("v_mov_b32 v3, v2")
    cfg.lda = D * 2
    gemm_setup_addrs(a, cfg)
    a(f"s_mul_i32 s26, s30, {64 * D * 2}")
    a("s_mul_i32 s27, s31, 192")
    a("s_add_u32 s28, s27, 128")
    emit_zero_acc(a, cfg, 24)
    nd = ndma(cfg)
    n1, n2 = D // 32, F // 32
    emit_dma(a, cfg, 0); emit_advance(a, cfg)
    emit_dma(a, cfg, 1); emit_advance(a, cfg)
    a("v_lshrrev_b32 v10, 2, v0")
    a("s_lshl_b32 s33, s24, 4")
    a("s_lshl_b32 s34, s30, 6")
    a("s_add_u32 s33, s33, s34")
    a("v_add_u32 v10, s33, v10")
    a(f"s_mov_b32 s33, {D*2}")
    a("v_mul_lo_u32 v10, v10, s33")
    a("v_and_b32 v11, 3, v0")
    a("v_mul_u32_u24 v11, 288, v11")
    a("v_add_u32 v10, v10, v11")
    a("v_mov_b32 v12, 0")
    GW = 80
    XB = 152
    for j in range(18):
        a(f"buffer_load_dwordx4 {vr(GW+4*j,4)}, v11, s[52:55], 0 offen offset:{16*j}")
    for j in range(18):
        a(f"buffer_load_dwordx4 {vr(XB+4*j,4)}, v10, s[48:51], 0 offen offset:{16*j}")
    a("s_waitcnt vmcnt(0)")
    for j in range(72):
        a(f"v_dot2_f32_bf16 v12, v{XB+j}, v{GW+j}, v12")
    a("s_nop 3")
    a("v_add_f32 v12, v12, v12 quad_perm:[1,0,3,2] row_mask:0xf bank_mask:0xf")
    a("s_nop 1")
    a("v_add_f32 v12, v12, v12 quad_perm:[2,3,0,1] row_mask:0xf bank_mask:0xf")
    a("v_cvt_pk_bf16_f32 v12, v12, v12")
    a("v_lshlrev_b32 v12, 16, v12")
    a("v_mul_f32 v12, 0xbfb8aa3b, v12")
    a("v_exp_f32 v12, v12")
    a("s_nop 0")
    a("v_add_f32 v12, 1.0, v12")
    a("v_rcp_f32 v12, v12")
    a("s_nop 0")
    a("v_cvt_pk_bf16_f32 v12, v12, v12")
    a("v_lshlrev_b32 v12, 16, v12")
    a("v_lshrrev_b32 v10, 2, v0")
    a("s_lshl_b32 s33, s24, 4")
    a("v_add_u32 v10, s33, v10")
    a("v_lshlrev_b32 v10, 2, v10")
    a(f"ds_write_b32 v10, v12 offset:{LG}")
    def switch_to_h():
        a("s_mov_b32 s8, s16"); a("s_mov_b32 s9, s17"); a("s_mov_b32 s10, s18")
        a("s_mov_b32 s12, s20"); a("s_mov_b32 s13, s21"); a("s_mov_b32 s14, s22")
        a("v_mov_b32 v2, v3")
        a(f"s_mul_i32 s26, s30, {64 * F * 2}")
        a("s_mul_i32 s27, s31, 192")
        a("s_add_u32 s28, s27, 128")
    for i in range(n1):
        if i + 2 == n1:
            switch_to_h()
        emit_step(a, cfg, i % NSTAGE, True, nd)
    a("s_nop 15")
    a("s_nop 7")
    for r in range(12):
        a(f"v_cvt_pk_bf16_f32 v{APK+r}, v{cfg.acc+2*r}, v{cfg.acc+2*r+1}")
    emit_zero_acc(a, cfg, 24)
    a("s_nop 1")
    assert n1 % 3 == 0 and n2 % 3 == 0
    a("s_mov_b32 s29, 0")
    a.label("fin_loop")
    for i in range(3):
        emit_step(a, cfg, i, True, nd)
    a("s_add_u32 s29, s29, 1")
    a(f"s_cmp_lt_u32 s29, {n2//3 - 1}")
    a("s_cbranch_scc1 fin_loop")
    emit_step(a, cfg, 0, True, nd)
    emit_step(a, cfg, 1, False, nd)
    emit_step(a, cfg, 2, False, 0)
    a("s_nop 15")
    a("s_nop 7")
    a("v_and_b32 v10, 15, v0")
    a("s_lshr_b32 s26, s24, 1")
    a("s_lshl_b32 s26, s26, 5")
    a("v_add_u32 v10, s26, v10")
    a("v_lshlrev_b32 v11, 2, v10")
    a(f"ds_read_b32 v12, v11 offset:{LG}")
    a(f"ds_read_b32 v13, v11 offset:{LG+64}")
    a(f"s_mov_b32 s26, {D*2}")
    a("v_mul_lo_u32 v10, v10, s26")
    a("v_lshrrev_b32 v11, 4, v0")
    a("v_lshlrev_b32 v11, 3, v11")
    a("s_and_b32 s26, s24, 1")
    a("s_mul_i32 s26, s26, 96")
    a("v_add3_u32 v10, v10, v11, s26")
    a(f"s_mul_i32 s26, s30, {64*D*2}")
    a("s_mul_i32 s27, s31, 192")
    a("s_add_u32 s26, s26, s27")
    a("s_waitcnt lgkmcnt(0)")
    for mt in range(2):
        a(f"v_sub_f32 v{2+mt}, 1.0, v{12+mt}")
        a(f"v_cvt_pk_bf16_f32 v{2+mt}, v{2+mt}, v{2+mt}")
        a(f"v_lshlrev_b32 v{2+mt}, 16, v{2+mt}")
    for mt in range(2):
        for t in range(3):
            idx = t * 2 + mt
            o = 20 + 10 * (idx % 2)
            for p in range(2):
                apk = APK + idx * 2 + p
                acc = cfg.acc + idx * 4 + 2 * p
                a(f"v_lshlrev_b32 v{o+2}, 16, v{apk}")
                a(f"v_and_b32 v{o+3}, 0xffff0000, v{apk}")
                a(f"v_cvt_pk_bf16_f32 v{o+4}, v{acc}, v{acc+1}")
                a(f"v_lshlrev_b32 v{o+5}, 16, v{o+4}")
                a(f"v_and_b32 v{o+6}, 0xffff0000, v{o+4}")
                a(f"v_mul_f32 v{o+2}, v{12+mt}, v{o+2}")
                a(f"v_mul_f32 v{o+3}, v{12+mt}, v{o+3}")
                a(f"v_mul_f32 v{o+5}, v{2+mt}, v{o+5}")
                a(f"v_mul_f32 v{o+6}, v{2+mt}, v{o+6}")
                a(f"v_cvt_pk_bf16_f32 v{o+4}, v{o+2}, v{o+3}")
                a(f"v_cvt_pk_bf16_f32 v{o+7}, v{o+5}, v{o+6}")
                a(f"v_lshlrev_b32 v{o+2}, 16, v{o+4}")
                a(f"v_and_b32 v{o+3}, 0xffff0000, v{o+4}")
                a(f"v_lshlrev_b32 v{o+5}, 16, v{o+7}")
                a(f"v_and_b32 v{o+6}, 0xffff0000, v{o+7}")
                a(f"v_add_f32 v{o+2}, v{o+2}, v{o+5}")
                a(f"v_add_f32 v{o+3}, v{o+3}, v{o+6}")
                a(f"v_cvt_pk_bf16_f32 v{o+p}, v{o+2}, v{o+3}")
            a(f"buffer_store_dwordx2 {vr(o,2)}, v10, s[56:59], s26 offen offset:{t*32}")
        if mt == 0:
            a(f"s_add_u32 s26, s26, {16*D*2}")
    a.label("fin_done")
    a("s_endpgm")
    return name, NWG, LG + 256, 224
```

```python
from asmlib import *

class GemmCfg:
    pass

NSTAGE = 3

def gemm_prologue_ids(a, cfg):
    a("v_lshrrev_b32 v1, 6, v0")
    a("s_nop 0")
    a("v_readfirstlane_b32 s24, v1")
    a("v_and_b32 v0, 63, v0")
    a("s_lshl_b32 s25, s24, 10")

def gemm_setup_addrs(a, cfg):
    TM, MT, NTW = cfg.TM, cfg.MT, cfg.NTW
    lda, ldb = cfg.lda, cfg.ldb
    a("v_lshrrev_b32 v10, 2, v0")
    a("v_lshrrev_b32 v11, 4, v0")
    a("v_sub_u32 v11, 4, v11")
    a("v_and_b32 v11, 3, v11")
    a("v_and_b32 v12, 3, v0")
    a("v_xor_b32 v12, v12, v11")
    a("s_lshl_b32 s26, s24, 4")
    a("v_add_u32 v10, s26, v10")
    a(f"s_mov_b32 s26, {lda}")
    a("v_mul_lo_u32 v10, v10, s26")
    a("v_lshl_add_u32 v2, v12, 4, v10")
    for j in range(1, TM // 64):
        a(f"v_add_u32 v{2+j}, {64*j*lda}, v2")
    a("v_lshrrev_b32 v10, 3, v0")
    a("v_lshrrev_b32 v11, 4, v0")
    a("v_and_b32 v11, 1, v11")
    a("s_and_b32 s26, s24, 1")
    a("s_lshl_b32 s26, s26, 1")
    a("v_or_b32 v11, s26, v11")
    a("v_bfe_u32 v12, v0, 1, 2")
    a("v_xor_b32 v12, v12, v11")
    a("v_and_b32 v13, 1, v0")
    a("v_lshlrev_b32 v13, 4, v13")
    a("v_lshl_add_u32 v13, v12, 5, v13")
    a("s_lshl_b32 s26, s24, 3")
    a("v_add_u32 v10, s26, v10")
    a(f"s_mov_b32 s26, {ldb}")
    a("v_mul_lo_u32 v10, v10, s26")
    a("v_add_u32 v4, v10, v13")
    if getattr(cfg, "half_last_sub", False):
        a("v_cmp_lt_u32 vcc, 1, v12")
        a("v_mov_b32 v5, 0x7f000000")
        a("s_nop 1")
        a("v_cndmask_b32 v5, v4, v5, vcc")
    a("v_bfe_u32 v10, v0, 2, 2")
    a("v_sub_u32 v10, 4, v10")
    a("v_and_b32 v10, 3, v10")
    a("v_lshrrev_b32 v11, 4, v0")
    a("v_xor_b32 v10, v10, v11")
    a("v_and_b32 v11, 15, v0")
    a("s_lshr_b32 s26, s24, 1")
    a(f"s_mul_i32 s26, s26, {MT*16}")
    a("v_add_u32 v11, s26, v11")
    a("v_lshlrev_b32 v11, 6, v11")
    a(f"v_lshl_add_u32 v{cfg.vA}, v10, 4, v11")
    a("v_lshrrev_b32 v10, 4, v0")
    a("v_bfe_u32 v11, v0, 2, 2")
    a("v_lshl_add_u32 v11, v10, 3, v11")
    a("v_lshlrev_b32 v11, 7, v11")
    a("v_and_b32 v12, 3, v0")
    a("v_lshl_add_u32 v11, v12, 3, v11")
    a("v_bfe_u32 v12, v0, 3, 1")
    a("v_and_b32 v10, 1, v10")
    a("v_lshl_or_b32 v12, v10, 1, v12")
    a("s_and_b32 s26, s24, 1")
    a(f"s_mul_i32 s26, s26, {NTW}")
    for t in range(NTW):
        a(f"s_add_u32 s27, s26, {t}")
        a("s_and_b32 s28, s27, 3")
        a("s_lshr_b32 s27, s27, 2")
        a("s_lshl_b32 s27, s27, 12")
        a(f"s_add_u32 s27, s27, {TM*64}")
        a("v_xor_b32 v10, s28, v12")
        a("v_lshl_add_u32 v10, v10, 5, v11")
        a(f"v_add_u32 v{cfg.vB+t}, s27, v10")

def stage_bytes(cfg):
    return cfg.TM * 64 + cfg.NSUB * 4096

def emit_dma(a, cfg, stage):
    base = stage * stage_bytes(cfg)
    for j in range(cfg.TM // 64):
        a(f"s_add_u32 m0, s25, {base + j*4096}")
        a("s_nop 0")
        a(f"buffer_load_dwordx4 v{2+j}, s[8:11], s26 offen lds")
    for s in range(cfg.NSUB):
        a(f"s_add_u32 m0, s25, {base + cfg.TM*64 + s*4096}")
        srdn = cfg.sub_srd[s]
        soff = cfg.sub_soff[s]
        vo = 5 if (getattr(cfg, "half_last_sub", False) and s == cfg.NSUB - 1) else 4
        a("s_nop 0")
        a(f"buffer_load_dwordx4 v{vo}, s[{srdn}:{srdn+3}], s{soff} offen lds")

def emit_advance(a, cfg):
    a("s_add_u32 s26, s26, 64")
    for so in sorted(set(cfg.sub_soff)):
        a(f"s_add_u32 s{so}, s{so}, {32*cfg.ldb}")

def ndma(cfg):
    return cfg.TM // 64 + cfg.NSUB

def emit_step(a, cfg, stage, issue_next, wait_n):
    base = stage * stage_bytes(cfg)
    bbase = base
    MT = cfg.MT
    a(f"s_waitcnt vmcnt({wait_n})")
    a("s_barrier")
    for mt in range(MT):
        a(f"ds_read_b128 {vr(cfg.fA + 4*mt, 4)}, v{cfg.vA} offset:{base + mt*1024}")
    ph = cfg.phases
    def wreads(phase, fbase):
        for q, (t, xoff, grp) in enumerate(phase):
            for h2 in range(2):
                a(f"ds_read_b64_tr_b16 {vr(fbase + 4*q + 2*h2, 2)}, v{cfg.vB+t} offset:{bbase + xoff + h2*512}")
    def mfmas(phase, fbase):
        for q, (t, xoff, grp) in enumerate(phase):
            for mt in range(MT):
                acc = cfg.acc + 4 * (grp * MT + mt)
                wf = vr(fbase + 4*q, 4)
                af = vr(cfg.fA + 4*mt, 4)
                if cfg.swap(grp):
                    a(f"v_mfma_f32_16x16x32_bf16 {vr(acc,4)}, {wf}, {af}, {vr(acc,4)}")
                else:
                    a(f"v_mfma_f32_16x16x32_bf16 {vr(acc,4)}, {af}, {wf}, {vr(acc,4)}")
    wreads(ph[0], cfg.fW0)
    if issue_next:
        emit_dma(a, cfg, (stage + 2) % NSTAGE)
        emit_advance(a, cfg)
    a("s_waitcnt lgkmcnt(0)")
    wreads(ph[1], cfg.fW1)
    mfmas(ph[0], cfg.fW0)
    a("s_waitcnt lgkmcnt(0)")
    mfmas(ph[1], cfg.fW1)

def emit_zero_acc(a, cfg, n):
    for r in range(n):
        a(f"v_mov_b32 v{cfg.acc + r}, 0")
```

```python
import sys, math
from asmlib import *
from gemm import *
from attn import gen_attn
from final import gen_final

S, D, H, DH, F = 2048, 576, 32, 18, 4608
WS_QM, WS_QT, WS_KM, WS_KT, WS_VT = 0x0, 0x200000, 0x240000, 0x440000, 0x480000
WS_H, WS_O = 0x800000, 0x1A00000
WS_SIZE = 268435456
QSCALE = math.log2(math.e) / math.sqrt(DH)

def f32bits(x):
    import struct
    return struct.unpack("<I", struct.pack("<f", x))[0]

def kernel_head(a, name):
    a(f".globl {name}")
    a(".p2align 8")
    a(f".type {name},@function")
    a.label(name)

def gen_gu(a):
    name = "gu_kernel"
    kernel_head(a, name)
    cfg = GemmCfg()
    cfg.TM, cfg.MT, cfg.NTW, cfg.NSUB = 128, 4, 4, 4
    cfg.lda, cfg.ldb = D * 2, F * 2
    cfg.vA, cfg.vB = 6, 14
    cfg.fA, cfg.fW0, cfg.fW1 = 20, 36, 52
    cfg.acc = 68
    cfg.sub_srd = [12, 12, 16, 16]
    cfg.sub_soff = [27, 28, 27, 28]
    cfg.phases = [[(t, 0, t) for t in range(4)], [(t, 8192, 4 + t) for t in range(4)]]
    cfg.swap = lambda g: True
    NWG = 16 * 36
    a(f"s_cmp_ge_u32 s2, {NWG}")
    a("s_cbranch_scc1 gu_done")
    a("s_load_dwordx2 s[4:5], s[0:1], 0")
    a("s_load_dwordx4 s[40:43], s[0:1], 32")
    a("s_load_dwordx2 s[44:45], s[0:1], 80")
    gemm_prologue_ids(a, cfg)
    a("s_and_b32 s30, s2, 7")
    a("s_mul_i32 s30, s30, 72")
    a("s_lshr_b32 s31, s2, 3")
    a("s_add_u32 s30, s30, s31")
    a("s_lshr_b32 s31, s30, 4")
    a("s_and_b32 s30, s30, 15")
    a("s_waitcnt lgkmcnt(0)")
    srd(a, 8, 4, S * D * 2)
    srd(a, 12, 40, D * F * 2)
    srd(a, 16, 42, D * F * 2)
    srd(a, 20, 44, S * F * 2, WS_H)
    gemm_setup_addrs(a, cfg)
    a(f"s_mul_i32 s26, s30, {128 * D * 2}")
    a("s_lshl_b32 s27, s31, 8")
    a("s_add_u32 s28, s27, 128")
    emit_zero_acc(a, cfg, 128)
    nsteps = D // 32
    emit_dma(a, cfg, 0); emit_advance(a, cfg)
    emit_dma(a, cfg, 1); emit_advance(a, cfg)
    nd = ndma(cfg)
    for i in range(nsteps):
        issue = i + 2 < nsteps
        wait = nd if i + 1 < nsteps else 0
        emit_step(a, cfg, i % NSTAGE, issue, wait)
    a("s_nop 15")
    a("s_nop 7")
    a("v_and_b32 v10, 15, v0")
    a("s_lshr_b32 s26, s24, 1")
    a("s_lshl_b32 s26, s26, 6")
    a("v_add_u32 v10, s26, v10")
    a(f"s_mov_b32 s26, {F*2}")
    a("v_mul_lo_u32 v10, v10, s26")
    a("v_lshrrev_b32 v11, 4, v0")
    a("v_lshlrev_b32 v11, 3, v11")
    a("s_and_b32 s26, s24, 1")
    a("s_lshl_b32 s26, s26, 7")
    a("v_add3_u32 v10, v10, v11, s26")
    a(f"s_mul_i32 s26, s30, {128 * F * 2}")
    a("s_lshl_b32 s27, s31, 8")
    a("s_add_u32 s26, s26, s27")
    for mt in range(4):
        for t in range(4):
            g = cfg.acc + 4 * (t * 4 + mt)
            u = cfg.acc + 4 * ((4 + t) * 4 + mt)
            tmp = 20 + 8 * ((mt * 4 + t) % 4)
            for p in range(2):
                a(f"v_cvt_pk_bf16_f32 v{tmp+2}, v{g+2*p}, v{g+2*p+1}")
                a(f"v_cvt_pk_bf16_f32 v{tmp+3}, v{u+2*p}, v{u+2*p+1}")
                a(f"v_lshlrev_b32 v{tmp+4}, 16, v{tmp+2}")
                a(f"v_and_b32 v{tmp+5}, 0xffff0000, v{tmp+2}")
                a(f"v_lshlrev_b32 v{tmp+6}, 16, v{tmp+3}")
                a(f"v_and_b32 v{tmp+7}, 0xffff0000, v{tmp+3}")
                a(f"v_mul_f32 v{tmp+4}, v{tmp+4}, v{tmp+6}")
                a(f"v_mul_f32 v{tmp+5}, v{tmp+5}, v{tmp+7}")
                a(f"v_cvt_pk_bf16_f32 v{tmp+p}, v{tmp+4}, v{tmp+5}")
            a(f"buffer_store_dwordx2 {vr(tmp,2)}, v10, s[20:23], s26 offen offset:{t*32}")
        if mt < 3:
            a(f"s_add_u32 s26, s26, {16 * F * 2}")
    a.label("gu_done")
    a("s_endpgm")
    return name, NWG, NSTAGE * stage_bytes(cfg), 196

def gen_qkv(a):
    name = "qkv_kernel"
    kernel_head(a, name)
    cfg = GemmCfg()
    cfg.TM, cfg.MT, cfg.NTW, cfg.NSUB = 128, 4, 6, 3
    cfg.lda, cfg.ldb = D * 2, 3 * D * 2
    cfg.vA, cfg.vB = 6, 14
    cfg.fA, cfg.fW0, cfg.fW1 = 20, 36, 48
    cfg.acc = 60
    cfg.sub_srd = [12, 12, 12]
    cfg.sub_soff = [27, 28, 29]
    cfg.phases = [[(t, 0, t) for t in range(3)], [(t, 0, t) for t in range(3, 6)]]
    NWG = 16 * 9
    a(f"s_cmp_ge_u32 s2, {NWG}")
    a("s_cbranch_scc1 qkv_done")
    a("s_load_dwordx4 s[4:7], s[0:1], 0")
    a("s_load_dwordx2 s[44:45], s[0:1], 80")
    gemm_prologue_ids(a, cfg)
    a("s_and_b32 s30, s2, 7")
    a("s_mul_i32 s30, s30, 18")
    a("s_lshr_b32 s31, s2, 3")
    a("s_add_u32 s30, s30, s31")
    a("s_lshr_b32 s31, s30, 4")
    a("s_and_b32 s30, s30, 15")
    a("s_waitcnt lgkmcnt(0)")
    srd(a, 8, 4, S * D * 2)
    srd(a, 12, 6, D * 3 * D * 2)
    srd(a, 20, 44, WS_H)
    gemm_setup_addrs(a, cfg)
    a(f"s_mul_i32 s26, s30, {128 * D * 2}")
    a("s_mul_i32 s27, s31, 384")
    a("s_add_u32 s28, s27, 128")
    a("s_add_u32 s29, s27, 256")
    emit_zero_acc(a, cfg, 96)
    nsteps = D // 32
    nd = ndma(cfg)
    a("s_cmp_ge_u32 s31, 6")
    a("s_cbranch_scc1 qkv_vpath")
    for path in ("qk", "v"):
        if path == "v":
            a.label("qkv_vpath")
        cfg.swap = (lambda g: True) if path == "qk" else (lambda g: False)
        emit_dma(a, cfg, 0); emit_advance(a, cfg)
        emit_dma(a, cfg, 1); emit_advance(a, cfg)
        for i in range(nsteps):
            emit_step(a, cfg, i % NSTAGE, i + 2 < nsteps, nd if i + 1 < nsteps else 0)
        a("s_nop 15")
        a("s_nop 7")
        a("s_mul_i32 s26, s31, 171")
        a("s_lshr_b32 s26, s26, 9")
        a("s_mul_i32 s27, s26, 3")
        a("s_sub_u32 s27, s31, s27")
        a("s_mul_i32 s27, s27, 192")
        a("s_and_b32 s28, s24, 1")
        a("s_mul_i32 s28, s28, 96")
        a("s_add_u32 s27, s27, s28")
        a("s_lshr_b32 s28, s24, 1")
        a("s_lshl_b32 s28, s28, 6")
        a("s_lshl_b32 s29, s30, 7")
        a("s_add_u32 s28, s28, s29")
        if path == "qk":
            a(f"s_mul_i32 s26, s26, {WS_KM}")
            a(f"s_mov_b32 s33, {f32bits(QSCALE):#x}")
            a("s_mov_b32 s34, 1.0")
            a("s_cmp_eq_u32 s26, 0")
            a("s_cselect_b32 s33, s33, s34")
            a("s_mov_b32 s34, 3641")
            a("v_and_b32 v10, 15, v0")
            a("v_add_u32 v10, s28, v10")
            a("v_lshrrev_b32 v11, 4, v0")
            a("v_lshlrev_b32 v11, 2, v11")
            a("v_add_u32 v11, s27, v11")
            for t in range(6):
                for ps in range(2):
                    a(f"v_add_u32 v12, {t*16 + ps*2}, v11")
                    a("v_mul_lo_u32 v13, v12, s34")
                    a("v_lshrrev_b32 v13, 16, v13")
                    a("v_mul_u32_u24 v2, 18, v13")
                    a("v_sub_u32 v12, v12, v2")
                    a("v_lshrrev_b32 v2, 3, v12")
                    a("v_lshl_add_u32 v2, v13, 1, v2")
                    a("v_lshlrev_b32 v2, 15, v2")
                    a("v_and_b32 v3, 7, v12")
                    a("v_lshl_add_u32 v2, v3, 1, v2")
                    a("v_lshlrev_b32 v3, 13, v13")
                    a(f"v_add_u32 v3, {WS_QT}, v3")
                    a("v_cmp_lt_u32 vcc, 15, v12")
                    a("v_mov_b32 v4, 4")
                    a("v_mov_b32 v5, 2")
                    a("v_cndmask_b32 v2, v2, v3, vcc")
                    a("v_cndmask_b32 v4, v4, v5, vcc")
                    for mt in range(4):
                        acc = cfg.acc + 4 * (t * 4 + mt) + 2 * ps
                        tmp = 20 + 4 * (mt % 4)
                        a(f"v_mul_f32 v{tmp}, s33, v{acc}")
                        a(f"v_mul_f32 v{tmp+1}, s33, v{acc+1}")
                        a(f"v_cvt_pk_bf16_f32 v{tmp}, v{tmp}, v{tmp+1}")
                        a(f"v_add_u32 v{tmp+2}, {mt*16}, v10")
                        a(f"v_lshlrev_b32 v{tmp+2}, v4, v{tmp+2}")
                        a(f"v_add_u32 v{tmp+2}, v{tmp+2}, v2")
                        a(f"buffer_store_dword v{tmp}, v{tmp+2}, s[20:23], s26 offen")
            a("s_branch qkv_done")
        else:
            a("v_and_b32 v10, 15, v0")
            a("v_add_u32 v10, s27, v10")
            a("v_lshlrev_b32 v10, 12, v10")
            a("v_bfe_u32 v11, v0, 4, 1")
            a("v_lshrrev_b32 v12, 5, v0")
            a("v_lshlrev_b32 v11, 4, v11")
            a("v_lshl_add_u32 v11, v12, 3, v11")
            a("v_add_u32 v10, v10, v11")
            a("s_lshl_b32 s26, s28, 1")
            a(f"s_add_u32 s26, s26, {WS_VT}")
            for t in range(6):
                if t:
                    a(f"v_add_u32 v10, {16*4096}, v10")
                for mt in range(4):
                    acc = cfg.acc + 4 * (t * 4 + mt)
                    tmp = 20 + 2 * ((t * 4 + mt) % 8)
                    a(f"v_cvt_pk_bf16_f32 v{tmp}, v{acc}, v{acc+1}")
                    a(f"v_cvt_pk_bf16_f32 v{tmp+1}, v{acc+2}, v{acc+3}")
                    a(f"buffer_store_dwordx2 {vr(tmp,2)}, v10, s[20:23], s26 offen offset:{mt*32}")
    a.label("qkv_done")
    a("s_endpgm")
    return name, NWG, NSTAGE * stage_bytes(cfg), 156

def build(which):
    a = Asm()
    kernels = []
    for g in which:
        kernels.append(g(a))
    hdr = open("gated_mix__mha_block__glu_gated_bilinear__prompt.s.ref").read().split("\n")
    head = [l for l in hdr if l.startswith(";") and "@launch" not in l and "Override launch" not in l and "grid=ceil" not in l]
    out = "\n".join(head) + "\n"
    for (name, nwg, lds, vg) in kernels:
        out += f"; @launch kernel={name} grid=({nwg},1,1) block=(256,1,1) lds={lds}\n"
    out += '.amdgcn_target "amdgcn-amd-amdhsa--gfx950"\n.text\n'
    out += a.text()
    for (name, nwg, lds, vg) in kernels:
        out += kernel_desc(name, vg)
    return out

if __name__ == "__main__":
    txt = build([gen_qkv, gen_gu, gen_attn, gen_final])
    open(sys.argv[1] if len(sys.argv) > 1 else "dev.s", "w").write(txt)
```

```python
class Asm:
    def __init__(self):
        self.lines = []
    def __call__(self, s=""):
        import re
        m = re.search(r"^\s*buffer_.*offset:(\d+)", s)
        assert not (m and int(m.group(1)) > 4095), s
        for ln in s.split("\n"):
            self.lines.append(("    " + ln.strip()) if ln.strip() and not ln.strip().endswith(":") else ln.strip())
    def label(self, name):
        self.lines.append(name + ":")
    def comment(self, s):
        self.lines.append("    ; " + s)
    def text(self):
        return "\n".join(self.lines) + "\n"

def vr(b, n=1):
    return f"v{b}" if n == 1 else f"v[{b}:{b+n-1}]"
def sr(b, n=1):
    return f"s{b}" if n == 1 else f"s[{b}:{b+n-1}]"

def srd(a, d, base_lo, size, off=0):
    if off:
        a(f"s_add_u32 s{d}, s{base_lo}, {off}")
        a(f"s_addc_u32 s{d+1}, s{base_lo+1}, 0")
    else:
        a(f"s_mov_b32 s{d}, s{base_lo}")
        a(f"s_mov_b32 s{d+1}, s{base_lo+1}")
    a(f"s_mov_b32 s{d+2}, {size}")
    a(f"s_mov_b32 s{d+3}, 0x00020000")

def kernel_desc(name, vgpr, sgpr=102):
    acc = (vgpr + 3) // 4 * 4
    return f""".section .rodata,"a"
.p2align 6
.amdhsa_kernel {name}
  .amdhsa_next_free_vgpr {vgpr}
  .amdhsa_next_free_sgpr {sgpr}
  .amdhsa_accum_offset {acc}
  .amdhsa_group_segment_fixed_size 0
  .amdhsa_kernarg_size 88
  .amdhsa_user_sgpr_count 2
  .amdhsa_user_sgpr_kernarg_segment_ptr 1
  .amdhsa_system_sgpr_workgroup_id_x 1
.end_amdhsa_kernel
.text
"""

NOHEAD = [False]
def emit_head(a, name):
    if NOHEAD[0]:
        a.label(name + "_body")
        return
    a(f".globl {name}"); a(".p2align 8"); a(f".type {name},@function"); a.label(name)
```

```python
from asmlib import *
import os
XE = os.environ.get('XE')
S, D, H, DH = 2048, 576, 32, 18
WS_QM, WS_QT, WS_KM, WS_KT, WS_VT = 0x0, 0x200000, 0x240000, 0x440000, 0x480000
WS_H, WS_O = 0x800000, 0x1A00000
CK = 512
L_KT = 16384
L_V = 18432
VROW = 1024 + 16
CH = 37376
L_ONES = 2 * CH
L_ZERO = L_ONES + 64
L_TOTAL = L_ZERO + 64
THR = 8.0
NW = 8

Q, QT = 8, 12
KM = [16, 24]; KT = [20, 28]
VF = [32, 40]
SS = [48, 64]
NM = 80
OO = 96
PP = 112
T0 = 120

def qk(a, par):
    s = SS[par]
    a(f"v_mfma_f32_32x32x16_bf16 {vr(s,16)}, {vr(KM[par],4)}, {vr(Q,4)}, {vr(NM,16)}")
    a(f"v_mfma_f32_32x32x16_bf16 {vr(s,16)}, {vr(KT[par],4)}, {vr(QT,4)}, {vr(s,16)}")

def kreads(a, par):
    a(f"ds_read_b128 {vr(KM[par],4)}, v2")
    a(f"ds_read_b32 v{KT[par]}, v3")
    a("v_add_u32 v2, 512, v2")
    a("v_add_u32 v3, v4, v3")

def vreads(a, par):
    a(f"ds_read_b128 {vr(VF[par],4)}, v5")
    a(f"ds_read_b128 {vr(VF[par]+4,4)}, v5 offset:32")
    a("v_add_u32 v5, v6, v5")

def maxtree(a, s, dst):
    a(f"v_max3_f32 v{dst}, v{s}, v{s+1}, v{s+2}")
    a(f"v_max3_f32 v{dst+1}, v{s+3}, v{s+4}, v{s+5}")
    a(f"v_max3_f32 v{dst}, v{dst}, v{s+6}, v{s+7}")
    a(f"v_max3_f32 v{dst+1}, v{dst+1}, v{s+8}, v{s+9}")
    a(f"v_max3_f32 v{dst}, v{dst}, v{s+10}, v{s+11}")
    a(f"v_max3_f32 v{dst+1}, v{dst+1}, v{s+12}, v{s+13}")
    a(f"v_max3_f32 v{dst}, v{dst}, v{s+14}, v{s+15}")
    a(f"v_max_f32 v{dst}, v{dst}, v{dst+1}")

def rescale_body(a, par, first):
    s, s2 = SS[par], SS[par ^ 1]
    t = T0
    a(f"v_mov_b32 v{t+1}, v{t}")
    a(f"v_mov_b32 v{t+2}, v{t}")
    a("s_nop 1")
    a(f"v_permlane32_swap_b32 v{t+1}, v{t+2}")
    a("s_nop 1")
    a(f"v_max_f32 v{t}, v{t+1}, v{t+2}")
    if not first:
        a(f"v_max_f32 v{t}, 0, v{t}")
        a(f"v_sub_f32 v{t+1}, 0, v{t}")
        a(f"v_exp_f32 v{t+1}, v{t+1}")
        a("s_nop 0")
        for r in range(12):
            a(f"v_mul_f32 v{OO+r}, v{OO+r}, v{t+1}")
    for i in range(16):
        a(f"v_sub_f32 v{s+i}, v{s+i}, v{t}")
    a("s_nop 15")
    a("s_nop 7")
    for i in range(16):
        a(f"v_sub_f32 v{NM+i}, v{NM+i}, v{t}")
    for i in range(16):
        a(f"v_sub_f32 v{s2+i}, v{s2+i}, v{t}")

def tile(a, par, tag, first, cold):
    s = SS[par]
    t = T0
    a("s_waitcnt lgkmcnt(2)")
    qk(a, par ^ 1)
    maxtree(a, s, t)
    kreads(a, par)
    if first:
        rescale_body(a, par, True)
    else:
        a(f"v_cmp_lt_f32 vcc, s35, v{t}")
        a("s_nop 1")
        a(f"s_cbranch_vccnz resc_{tag}")
        a.label(f"back_{tag}")
        cold.append((par, tag))
    for i in range(8):
        a(f"v_exp_f32 v{s+i}, v{s+i}")
    for i in range(4):
        a(f"v_cvt_pk_bf16_f32 v{PP+i}, v{s+2*i}, v{s+2*i+1}")
    for i in range(8, 10):
        a(f"{'v_mov_b32' if XE else 'v_exp_f32'} v{s+i}, v{s+i}")
    a(f"v_mfma_f32_32x32x16_bf16 {vr(OO,16)}, {vr(VF[par],4)}, {vr(PP,4)}, {vr(OO,16)}")
    for i in range(10, 16):
        a(f"{'v_mov_b32' if XE else 'v_exp_f32'} v{s+i}, v{s+i}")
    for i in range(4, 8):
        a(f"v_cvt_pk_bf16_f32 v{PP+i}, v{s+2*i}, v{s+2*i+1}")
    a("s_nop 1")
    a(f"v_mfma_f32_32x32x16_bf16 {vr(OO,16)}, {vr(VF[par]+4,4)}, {vr(PP+4,4)}, {vr(OO,16)}")
    vreads(a, par)

def chunk_dma(a, buf):
    for j in range(5):
        a(f"s_add_u32 m0, s{55+j}, {buf*CH}")
        a("s_nop 0")
        a(f"buffer_load_dwordx4 v1, s[8:11], s{50+j} offen lds")
    a("s_add_u32 s50, s50, 8192")
    a("s_add_u32 s51, s51, 8192")
    for j in range(3):
        a(f"s_add_u32 s{52+j}, s{52+j}, s{60+j}")

def chunk(a, tagp, first, cold):
    kreads(a, 0)
    vreads(a, 0)
    a("s_waitcnt lgkmcnt(2)")
    qk(a, 0)
    kreads(a, 1)
    vreads(a, 1)
    a("s_nop 15")
    a("s_nop 7")
    tile(a, 0, tagp + "t0", first, cold)
    a("s_mov_b32 s28, 0")
    a.label(tagp + "loop")
    tile(a, 1, tagp + "l1", False, cold)
    tile(a, 0, tagp + "l0", False, cold)
    a("s_add_u32 s28, s28, 1")
    a("s_cmp_lt_u32 s28, 7")
    a(f"s_cbranch_scc1 {tagp}loop")
    tile(a, 1, tagp + "tl", False, cold)

def gen_attn(a):
    name = "attn_kernel"
    emit_head(a, name)
    NWG = 256
    a(f"s_cmp_ge_u32 s2, {NWG}")
    a("s_cbranch_scc1 attn_done")
    a("s_load_dwordx2 s[44:45], s[0:1], 80")
    a("v_lshrrev_b32 v1, 6, v0")
    a("s_nop 0")
    a("v_readfirstlane_b32 s24, v1")
    a("v_and_b32 v0, 63, v0")
    a("s_and_b32 s30, s2, 7")
    a("s_lshl_b32 s30, s30, 5")
    a("s_lshr_b32 s31, s2, 3")
    a("s_add_u32 s30, s30, s31")
    a("s_and_b32 s31, s30, 7")
    a("s_lshr_b32 s30, s30, 3")
    a("s_waitcnt lgkmcnt(0)")
    srd(a, 8, 44, WS_H)
    srd(a, 12, 44, S * D * 2, WS_O)
    a(f"s_mov_b32 s35, {THR}")
    a("v_lshlrev_b32 v1, 4, v0")
    a("s_lshl_b32 s25, s24, 10")
    a("s_lshl_b32 s26, s30, 16")
    a(f"s_add_u32 s26, s26, {WS_KM}")
    a("s_add_u32 s50, s26, s25")
    a("s_add_u32 s51, s50, 32768")
    a("s_mov_b32 s55, s25")
    a("s_add_u32 s56, s25, 8192")
    for j in range(3):
        a(f"s_add_u32 s26, s24, {8*j}")
        if j == 2:
            a("s_cmp_ge_u32 s26, 20")
            a("s_cselect_b32 s27, 8, 0")
            a("s_sub_u32 s26, s26, s27")
        a("s_mul_i32 s27, s30, 18")
        a("s_add_u32 s27, s27, s26")
        a("s_lshl_b32 s27, s27, 12")
        a(f"s_add_u32 s27, s27, {WS_VT}")
        a(f"s_mul_i32 s28, s26, {VROW}")
        a(f"s_add_u32 s28, s28, {L_V}")
        a("s_sub_u32 s29, s26, 18")
        a("s_lshl_b32 s29, s29, 10")
        a("s_lshl_b32 s33, s30, 13")
        a("s_add_u32 s33, s33, s29")
        a(f"s_add_u32 s33, s33, {WS_KT}")
        a(f"s_add_u32 s29, s29, {L_KT}")
        a("s_cmp_lt_u32 s26, 18")
        a(f"s_cselect_b32 s{52+j}, s27, s33")
        a(f"s_cselect_b32 s{57+j}, s28, s29")
        a(f"s_cselect_b32 s{60+j}, 1, 2")
        a(f"s_lshl_b32 s{60+j}, s{60+j}, 10")
    chunk_dma(a, 0)
    a("v_lshlrev_b32 v2, 2, v0")
    a(f"v_add_u32 v2, {L_ONES}, v2")
    a("v_mov_b32 v3, 0x3f803f80")
    a("v_cmp_gt_u32 vcc, 16, v0")
    a("s_nop 1")
    a("v_cndmask_b32 v3, 0, v3, vcc")
    a("v_cmp_gt_u32 vcc, 32, v0")
    a("s_and_saveexec_b64 s[36:37], vcc")
    a("ds_write_b32 v2, v3")
    a("s_mov_b64 exec, s[36:37]")
    a("v_and_b32 v2, 31, v0")
    a("v_lshrrev_b32 v3, 5, v0")
    a("s_lshl_b32 s26, s31, 8")
    a("s_lshl_b32 s27, s24, 5")
    a("s_add_u32 s26, s26, s27")
    a("v_add_u32 v7, s26, v2")
    a("s_lshl_b32 s27, s30, 1")
    a("v_add_u32 v5, s27, v3")
    a("v_lshlrev_b32 v5, 11, v5")
    a("v_add_u32 v5, v5, v7")
    a("v_lshlrev_b32 v5, 4, v5")
    a(f"buffer_load_dwordx4 {vr(Q,4)}, v5, s[8:11], 0 offen")
    a("s_lshl_b32 s27, s30, 11")
    a("v_add_u32 v5, s27, v7")
    a("v_lshlrev_b32 v5, 2, v5")
    a(f"v_add_u32 v5, {WS_QT}, v5")
    a("v_cmp_lt_u32 vcc, 31, v0")
    a("v_mov_b32 v6, 0x7f000000")
    a("s_nop 1")
    a("v_cndmask_b32 v5, v5, v6, vcc")
    a(f"buffer_load_dword v{QT}, v5, s[8:11], 0 offen")
    chunk_dma(a, 1)
    for r in (QT+1, QT+2, QT+3, KT[0]+1, KT[0]+2, KT[0]+3, KT[1]+1, KT[1]+2, KT[1]+3):
        a(f"v_mov_b32 v{r}, 0")
    for r in range(NM, OO + 16):
        a(f"v_mov_b32 v{r}, 0")
    a("v_lshlrev_b32 v4, 13, v3")
    a("v_lshl_add_u32 v2, v2, 4, v4")
    a("v_and_b32 v4, 31, v0")
    a("v_lshlrev_b32 v4, 2, v4")
    a(f"v_add_u32 v4, {L_KT}, v4")
    a(f"v_mov_b32 v5, {L_ZERO}")
    a("v_mov_b32 v6, 128")
    a("v_cndmask_b32 v3, v4, v5, vcc")
    a("v_cndmask_b32 v4, v6, 0, vcc")
    a("v_and_b32 v5, 31, v0")
    a(f"s_mov_b32 s27, {VROW}")
    a("v_mul_lo_u32 v6, v5, s27")
    a("v_lshrrev_b32 v1, 5, v0")
    a("v_lshl_add_u32 v6, v1, 4, v6")
    a(f"v_add_u32 v6, {L_V}, v6")
    a(f"v_mov_b32 v1, {L_ZERO}")
    a(f"v_mov_b32 v{T0}, {L_ONES}")
    a("v_cmp_eq_u32 vcc, 18, v5")
    a("s_nop 1")
    a(f"v_cndmask_b32 v1, v1, v{T0}, vcc")
    a("v_cmp_gt_u32 vcc, 18, v5")
    a(f"v_mov_b32 v{T0}, 64")
    a("s_nop 1")
    a("v_cndmask_b32 v5, v1, v6, vcc")
    a(f"v_cndmask_b32 v6, 0, v{T0}, vcc")
    a("v_mov_b32 v123, v2")
    a("v_mov_b32 v124, v3")
    a("v_mov_b32 v125, v5")
    a(f"v_mov_b32 v{T0}, {CH}")
    a("v_cmp_ne_u32 vcc, 0, v4")
    a("s_nop 1")
    a(f"v_cndmask_b32 v126, 0, v{T0}, vcc")
    a("v_cmp_ne_u32 vcc, 0, v6")
    a("s_nop 1")
    a(f"v_cndmask_b32 v127, 0, v{T0}, vcc")
    a("v_lshlrev_b32 v1, 4, v0")
    a("s_waitcnt vmcnt(5) lgkmcnt(0)")
    a("s_barrier")
    cold = []
    chunk(a, "c0", True, cold)
    a("s_mov_b32 s63, 1")
    a.label("attn_chunks")
    a("s_waitcnt vmcnt(0) lgkmcnt(0)")
    a("s_barrier")
    a("s_cmp_ge_u32 s63, 3")
    a("s_cbranch_scc1 attn_nodma")
    a("s_and_b32 s64, s63, 1")
    a("s_cmp_eq_u32 s64, 1")
    a("s_cbranch_scc1 attn_dma0")
    chunk_dma(a, 1)
    a("s_branch attn_nodma")
    a.label("attn_dma0")
    chunk_dma(a, 0)
    a.label("attn_nodma")
    a("s_and_b32 s64, s63, 1")
    a(f"s_mul_i32 s64, s64, {CH}")
    a("v_add_u32 v2, s64, v123")
    a("s_cmp_eq_u32 s64, 0")
    a("s_cbranch_scc1 attn_b0")
    a("v_add_u32 v3, v126, v124")
    a("v_add_u32 v5, v127, v125")
    a("s_branch attn_b1")
    a.label("attn_b0")
    a("v_mov_b32 v3, v124")
    a("v_mov_b32 v5, v125")
    a.label("attn_b1")
    chunk(a, "cn", False, cold)
    a("s_add_u32 s63, s63, 1")
    a("s_cmp_lt_u32 s63, 4")
    a("s_cbranch_scc1 attn_chunks")
    a("s_nop 15")
    a("s_nop 7")
    a("v_lshrrev_b32 v1, 5, v0")
    a(f"s_mov_b32 s27, {D*2}")
    a("v_mul_lo_u32 v2, v7, s27")
    a("v_lshl_add_u32 v2, v1, 3, v2")
    a("s_mul_i32 s27, s30, 36")
    a("v_cmp_lt_u32 vcc, 31, v0")
    a("v_mov_b32 v4, 0x7f000000")
    a("s_nop 1")
    a("v_cndmask_b32 v3, v2, v4, vcc")
    o, t = OO, T0
    a(f"v_mov_b32 v{t}, v{o+10}")
    a(f"v_mov_b32 v{t+1}, v{o+10}")
    a("s_nop 1")
    a(f"v_permlane32_swap_b32 v{t}, v{t+1}")
    a("s_nop 1")
    a(f"v_rcp_f32 v{t}, v{t}")
    a("s_nop 0")
    for r in range(10):
        a(f"v_mul_f32 v{o+r}, v{o+r}, v{t}")
    for i in range(5):
        a(f"v_cvt_pk_bf16_f32 v{t+2+i}, v{o+2*i}, v{o+2*i+1}")
    a(f"buffer_store_dwordx2 {vr(t+2,2)}, v2, s[12:15], s27 offen")
    a(f"buffer_store_dwordx2 {vr(t+4,2)}, v2, s[12:15], s27 offen offset:16")
    a(f"buffer_store_dword v{t+6}, v3, s[12:15], s27 offen offset:32")
    a("s_endpgm")
    for (par, tag) in cold:
        a.label(f"resc_{tag}")
        rescale_body(a, par, False)
        a(f"s_branch back_{tag}")
    a.label("attn_done")
    a("s_endpgm")
    return name, NWG, L_TOTAL, 128, 512
```

```python
from asmlib import *
from gemm import *
S, D, H, DH, F = 2048, 576, 32, 18, 4608
WS_H, WS_O, WS_P = 0x800000, 0x1A00000, 0x2000000

def gen_final(a):
    name = "final_kernel"
    emit_head(a, name)
    cfg = GemmCfg()
    cfg.TM, cfg.MT, cfg.NTW, cfg.NSUB = 64, 2, 3, 2
    cfg.half_last_sub = True
    cfg.NST = NST = 6
    cfg.vBx = 224
    cfg.lda, cfg.ldb = D * 2, D * 2
    cfg.vA, cfg.vB = 6, 14
    cfg.fA, cfg.fW0, cfg.fW1 = 20, 28, 36
    cfg.acc = 40
    APK = 64
    cfg.sub_srd = [12, 12]
    cfg.sub_soff = [27, 28]
    cfg.phases = [[(0, 0, 0), (1, 0, 1)], [(2, 0, 2)]]
    cfg.swap = lambda g: True
    LG = NST * stage_bytes(cfg)
    NWG = 32 * 6
    a(f"s_cmp_ge_u32 s2, {NWG}")
    a("s_cbranch_scc1 fin_done")
    a("s_load_dwordx2 s[4:5], s[0:1], 0")
    a("s_load_dwordx2 s[6:7], s[0:1], 16")
    a("s_load_dwordx4 s[40:43], s[0:1], 48")
    a("s_load_dwordx2 s[46:47], s[0:1], 64")
    a("s_load_dwordx2 s[44:45], s[0:1], 80")
    gemm_prologue_ids(a, cfg)
    a("s_and_b32 s30, s2, 7")
    a("s_mul_i32 s30, s30, 24")
    a("s_lshr_b32 s31, s2, 3")
    a("s_add_u32 s30, s30, s31")
    a("s_lshr_b32 s31, s30, 5")
    a("s_and_b32 s30, s30, 31")
    a("s_waitcnt lgkmcnt(0)")
    srd(a, 8, 44, S * D * 2, WS_O)
    srd(a, 12, 6, D * D * 2)
    srd(a, 16, 44, 4 * S * D * 4, WS_P)
    srd(a, 20, 40, F * D * 2)
    srd(a, 48, 4, S * D * 2)
    srd(a, 52, 42, D * 2)
    srd(a, 56, 46, S * D * 2)
    cfg.lda = F * 2
    gemm_setup_addrs(a, cfg)
    a("v_mov_b32 v3, v2")
    cfg.lda = D * 2
    gemm_setup_addrs(a, cfg)
    setup_regsets(a, cfg)
    a(f"s_mul_i32 s26, s30, {64 * D * 2}")
    a("s_mul_i32 s27, s31, 192")
    a("s_add_u32 s28, s27, 128")
    emit_zero_acc(a, cfg, 24)
    nd = ndma(cfg)
    n1, n2 = D // 32, F // 32
    for st in range(NST - 1):
        emit_dma(a, cfg, st); emit_advance(a, cfg)
    WN = nd * (NST - 2)
    a("v_lshrrev_b32 v10, 2, v0")
    a("s_lshl_b32 s33, s24, 4")
    a("s_lshl_b32 s34, s30, 6")
    a("s_add_u32 s33, s33, s34")
    a("v_add_u32 v10, s33, v10")
    a(f"s_mov_b32 s33, {D*2}")
    a("v_mul_lo_u32 v10, v10, s33")
    a("v_and_b32 v11, 3, v0")
    a("v_mul_u32_u24 v11, 288, v11")
    a("v_add_u32 v10, v10, v11")
    a("v_mov_b32 v12, 0")
    GW = 80
    XB = 152
    for j in range(18):
        a(f"buffer_load_dwordx4 {vr(GW+4*j,4)}, v11, s[52:55], 0 offen offset:{16*j}")
    for j in range(18):
        a(f"buffer_load_dwordx4 {vr(XB+4*j,4)}, v10, s[48:51], 0 offen offset:{16*j}")
    a("s_waitcnt vmcnt(0)")
    for j in range(72):
        a(f"v_dot2_f32_bf16 v12, v{XB+j}, v{GW+j}, v12")
    a("s_nop 3")
    a("v_add_f32 v12, v12, v12 quad_perm:[1,0,3,2] row_mask:0xf bank_mask:0xf")
    a("s_nop 1")
    a("v_add_f32 v12, v12, v12 quad_perm:[2,3,0,1] row_mask:0xf bank_mask:0xf")
    a("v_cvt_pk_bf16_f32 v12, v12, v12")
    a("v_lshlrev_b32 v12, 16, v12")
    a("v_mul_f32 v12, 0xbfb8aa3b, v12")
    a("v_exp_f32 v12, v12")
    a("s_nop 0")
    a("v_add_f32 v12, 1.0, v12")
    a("v_rcp_f32 v12, v12")
    a("s_nop 0")
    a("v_cvt_pk_bf16_f32 v12, v12, v12")
    a("v_lshlrev_b32 v12, 16, v12")
    a("v_lshrrev_b32 v10, 2, v0")
    a("s_lshl_b32 s33, s24, 4")
    a("v_add_u32 v10, s33, v10")
    a("v_lshlrev_b32 v10, 2, v10")
    a(f"v_add_u32 v10, {LG}, v10")
    a(f"ds_write_b32 v10, v12")
    for i in range(n1):
        emit_step(a, cfg, i % NST, i + NST - 1 < n1, nd * min(NST - 2, n1 - 1 - i))
    a("s_nop 15")
    a("s_nop 7")
    for r in range(12):
        a(f"v_cvt_pk_bf16_f32 v{APK+r}, v{cfg.acc+2*r}, v{cfg.acc+2*r+1}")
    a("v_and_b32 v10, 15, v0")
    a("s_lshr_b32 s26, s24, 1")
    a("s_lshl_b32 s26, s26, 5")
    a("v_add_u32 v10, s26, v10")
    a("v_mul_u32_u24 v10, 2304, v10")
    a("v_lshrrev_b32 v11, 4, v0")
    a("v_lshlrev_b32 v11, 4, v11")
    a("s_and_b32 s26, s24, 1")
    a("s_mul_i32 s26, s26, 192")
    a("v_add3_u32 v10, v10, v11, s26")
    a(f"s_mul_i32 s26, s30, {64*2304}")
    a("s_mul_i32 s27, s31, 384")
    a("s_add_u32 s26, s26, s27")
    PB = 80
    for sp in range(4):
        for mt in range(2):
            for t in range(3):
                idx = t * 2 + mt
                a(f"buffer_load_dwordx4 {vr(PB + sp*24 + idx*4, 4)}, v10, s[16:19], s26 offen offset:{t*64}")
            a(f"s_add_u32 s26, s26, {16*2304 if mt == 0 else 2048*2304 - 16*2304}")
    a("s_waitcnt vmcnt(0)")
    for r in range(24):
        a(f"v_add_f32 v{PB+r}, v{PB+r}, v{PB+24+r}")
        a(f"v_add_f32 v{PB+48+r}, v{PB+48+r}, v{PB+72+r}")
    for r in range(24):
        a(f"v_add_f32 v{cfg.acc+r}, v{PB+r}, v{PB+48+r}")
    a("v_and_b32 v10, 15, v0")
    a("s_lshr_b32 s26, s24, 1")
    a("s_lshl_b32 s26, s26, 5")
    a("v_add_u32 v10, s26, v10")
    a("v_lshlrev_b32 v11, 2, v10")
    a(f"v_add_u32 v11, {LG}, v11")
    a(f"ds_read_b32 v12, v11")
    a(f"ds_read_b32 v13, v11 offset:64")
    a(f"s_mov_b32 s26, {D*2}")
    a("v_mul_lo_u32 v10, v10, s26")
    a("v_lshrrev_b32 v11, 4, v0")
    a("v_lshlrev_b32 v11, 3, v11")
    a("s_and_b32 s26, s24, 1")
    a("s_mul_i32 s26, s26, 96")
    a("v_add3_u32 v10, v10, v11, s26")
    a(f"s_mul_i32 s26, s30, {64*D*2}")
    a("s_mul_i32 s27, s31, 192")
    a("s_add_u32 s26, s26, s27")
    a("s_waitcnt lgkmcnt(0)")
    for mt in range(2):
        a(f"v_sub_f32 v{2+mt}, 1.0, v{12+mt}")
        a(f"v_cvt_pk_bf16_f32 v{2+mt}, v{2+mt}, v{2+mt}")
        a(f"v_lshlrev_b32 v{2+mt}, 16, v{2+mt}")
    for mt in range(2):
        for t in range(3):
            idx = t * 2 + mt
            o = 20 + 10 * (idx % 2)
            for p in range(2):
                apk = APK + idx * 2 + p
                acc = cfg.acc + idx * 4 + 2 * p
                a(f"v_lshlrev_b32 v{o+2}, 16, v{apk}")
                a(f"v_and_b32 v{o+3}, 0xffff0000, v{apk}")
                a(f"v_cvt_pk_bf16_f32 v{o+4}, v{acc}, v{acc+1}")
                a(f"v_lshlrev_b32 v{o+5}, 16, v{o+4}")
                a(f"v_and_b32 v{o+6}, 0xffff0000, v{o+4}")
                a(f"v_mul_f32 v{o+2}, v{12+mt}, v{o+2}")
                a(f"v_mul_f32 v{o+3}, v{12+mt}, v{o+3}")
                a(f"v_mul_f32 v{o+5}, v{2+mt}, v{o+5}")
                a(f"v_mul_f32 v{o+6}, v{2+mt}, v{o+6}")
                a(f"v_cvt_pk_bf16_f32 v{o+4}, v{o+2}, v{o+3}")
                a(f"v_cvt_pk_bf16_f32 v{o+7}, v{o+5}, v{o+6}")
                a(f"v_lshlrev_b32 v{o+2}, 16, v{o+4}")
                a(f"v_and_b32 v{o+3}, 0xffff0000, v{o+4}")
                a(f"v_lshlrev_b32 v{o+5}, 16, v{o+7}")
                a(f"v_and_b32 v{o+6}, 0xffff0000, v{o+7}")
                a(f"v_add_f32 v{o+2}, v{o+2}, v{o+5}")
                a(f"v_add_f32 v{o+3}, v{o+3}, v{o+6}")
                a(f"v_cvt_pk_bf16_f32 v{o+p}, v{o+2}, v{o+3}")
            a(f"buffer_store_dwordx2 {vr(o,2)}, v10, s[56:59], s26 offen offset:{t*32}")
        if mt == 0:
            a(f"s_add_u32 s26, s26, {16*D*2}")
    a.label("fin_done")
    a("s_endpgm")
    return name, NWG, LG + 256, 236
```

```python
from asmlib import *

class GemmCfg:
    pass

import os
NSTAGE = 3
NO_DMA = os.environ.get('NO_DMA')
NO_MFMA = os.environ.get('NO_MFMA')
NO_LDS = os.environ.get('NO_LDS')

def gemm_prologue_ids(a, cfg):
    a("v_lshrrev_b32 v1, 6, v0")
    a("s_nop 0")
    a("v_readfirstlane_b32 s24, v1")
    a("v_and_b32 v0, 63, v0")
    a("s_lshl_b32 s25, s24, 10")

def gemm_setup_addrs(a, cfg):
    TM, MT, NTW = cfg.TM, cfg.MT, cfg.NTW
    lda, ldb = cfg.lda, cfg.ldb
    a("v_lshrrev_b32 v10, 2, v0")
    a("v_lshrrev_b32 v11, 4, v0")
    a("v_sub_u32 v11, 4, v11")
    a("v_and_b32 v11, 3, v11")
    a("v_and_b32 v12, 3, v0")
    a("v_xor_b32 v12, v12, v11")
    a("s_lshl_b32 s26, s24, 4")
    a("v_add_u32 v10, s26, v10")
    a(f"s_mov_b32 s26, {lda}")
    a("v_mul_lo_u32 v10, v10, s26")
    a("v_lshl_add_u32 v2, v12, 4, v10")
    for j in range(1, TM // 64):
        a(f"v_add_u32 v{2+j}, {64*j*lda}, v2")
    a("v_lshrrev_b32 v10, 3, v0")
    a("v_lshrrev_b32 v11, 4, v0")
    a("v_and_b32 v11, 1, v11")
    a("s_and_b32 s26, s24, 1")
    a("s_lshl_b32 s26, s26, 1")
    a("v_or_b32 v11, s26, v11")
    a("v_bfe_u32 v12, v0, 1, 2")
    a("v_xor_b32 v12, v12, v11")
    a("v_and_b32 v13, 1, v0")
    a("v_lshlrev_b32 v13, 4, v13")
    a("v_lshl_add_u32 v13, v12, 5, v13")
    a("s_lshl_b32 s26, s24, 3")
    a("v_add_u32 v10, s26, v10")
    a(f"s_mov_b32 s26, {ldb}")
    a("v_mul_lo_u32 v10, v10, s26")
    a("v_add_u32 v4, v10, v13")
    if getattr(cfg, "half_last_sub", False):
        a("v_cmp_lt_u32 vcc, 1, v12")
        a("v_mov_b32 v5, 0x7f000000")
        a("s_nop 1")
        a("v_cndmask_b32 v5, v4, v5, vcc")
    a("v_bfe_u32 v10, v0, 2, 2")
    a("v_sub_u32 v10, 4, v10")
    a("v_and_b32 v10, 3, v10")
    a("v_lshrrev_b32 v11, 4, v0")
    a("v_xor_b32 v10, v10, v11")
    a("v_and_b32 v11, 15, v0")
    a("s_lshr_b32 s26, s24, 1")
    a(f"s_mul_i32 s26, s26, {MT*16}")
    a("v_add_u32 v11, s26, v11")
    a("v_lshlrev_b32 v11, 6, v11")
    a(f"v_lshl_add_u32 v{cfg.vA}, v10, 4, v11")
    a("v_lshrrev_b32 v10, 4, v0")
    a("v_bfe_u32 v11, v0, 2, 2")
    a("v_lshl_add_u32 v11, v10, 3, v11")
    a("v_lshlrev_b32 v11, 7, v11")
    a("v_and_b32 v12, 3, v0")
    a("v_lshl_add_u32 v11, v12, 3, v11")
    a("v_bfe_u32 v12, v0, 3, 1")
    a("v_and_b32 v10, 1, v10")
    a("v_lshl_or_b32 v12, v10, 1, v12")
    a("s_and_b32 s26, s24, 1")
    a(f"s_mul_i32 s26, s26, {NTW}")
    for t in range(NTW):
        a(f"s_add_u32 s27, s26, {t}")
        a("s_and_b32 s28, s27, 3")
        a("s_lshr_b32 s27, s27, 2")
        a("s_lshl_b32 s27, s27, 12")
        a(f"s_add_u32 s27, s27, {TM*64}")
        a("v_xor_b32 v10, s28, v12")
        a("v_lshl_add_u32 v10, v10, 5, v11")
        a(f"v_add_u32 v{cfg.vB+t}, s27, v10")

def nst(cfg):
    return getattr(cfg, "NST", 3)

def setup_regsets(a, cfg):
    sb = stage_bytes(cfg)
    cfg.per_set = max(1, (65536 - 12288) // sb)
    nsets = (nst(cfg) + cfg.per_set - 1) // cfg.per_set
    cfg.nsets = nsets
    for j in range(1, nsets):
        a(f"v_add_u32 v{cfg.vA + j}, {j*cfg.per_set*sb}, v{cfg.vA}")
        for t in range(cfg.NTW):
            a(f"v_add_u32 v{cfg.vBx + (j-1)*cfg.NTW + t}, {j*cfg.per_set*sb}, v{cfg.vB+t}")

def stage_bytes(cfg):
    return cfg.TM * 64 + cfg.NSUB * 4096

def emit_dma(a, cfg, stage):
    base = stage * stage_bytes(cfg)
    for j in range(cfg.TM // 64):
        a(f"s_add_u32 m0, s25, {base + j*4096}")
        a("s_nop 0")
        if not NO_DMA: a(f"buffer_load_dwordx4 v{2+j}, s[8:11], s26 offen lds")
    for s in range(cfg.NSUB):
        a(f"s_add_u32 m0, s25, {base + cfg.TM*64 + s*4096}")
        srdn = cfg.sub_srd[s]
        soff = cfg.sub_soff[s]
        vo = 5 if (getattr(cfg, "half_last_sub", False) and s == cfg.NSUB - 1) else 4
        a("s_nop 0")
        if not NO_DMA: a(f"buffer_load_dwordx4 v{vo}, s[{srdn}:{srdn+3}], s{soff} offen lds")

def emit_advance(a, cfg):
    a("s_add_u32 s26, s26, 64")
    for so in sorted(set(cfg.sub_soff)):
        a(f"s_add_u32 s{so}, s{so}, {32*cfg.ldb}")

def ndma(cfg):
    return cfg.TM // 64 + cfg.NSUB

def emit_step(a, cfg, stage, issue_next, wait_n):
    per = getattr(cfg, "per_set", 99)
    setj = stage // per
    base = (stage % per) * stage_bytes(cfg)
    bbase = base
    MT = cfg.MT
    vA = cfg.vA + setj
    vBf = (lambda t: cfg.vB + t) if setj == 0 else (lambda t: cfg.vBx + (setj-1)*cfg.NTW + t)
    a(f"s_waitcnt vmcnt({wait_n})")
    a("s_barrier")
    for mt in range(MT):
        if not NO_LDS: a(f"ds_read_b128 {vr(cfg.fA + 4*mt, 4)}, v{vA} offset:{base + mt*1024}")
    ph = cfg.phases
    def wreads(phase, fbase):
        if NO_LDS: return
        for q, (t, xoff, grp) in enumerate(phase):
            for h2 in range(2):
                a(f"ds_read_b64_tr_b16 {vr(fbase + 4*q + 2*h2, 2)}, v{vBf(t)} offset:{bbase + xoff + h2*512}")
    def mfmas(phase, fbase):
        if NO_MFMA: return
        for q, (t, xoff, grp) in enumerate(phase):
            for mt in range(MT):
                acc = cfg.acc + 4 * (grp * MT + mt)
                wf = vr(fbase + 4*q, 4)
                af = vr(cfg.fA + 4*mt, 4)
                if cfg.swap(grp):
                    a(f"v_mfma_f32_16x16x32_bf16 {vr(acc,4)}, {wf}, {af}, {vr(acc,4)}")
                else:
                    a(f"v_mfma_f32_16x16x32_bf16 {vr(acc,4)}, {af}, {wf}, {vr(acc,4)}")
    wreads(ph[0], cfg.fW0)
    if issue_next:
        emit_dma(a, cfg, (stage + nst(cfg) - 1) % nst(cfg))
        emit_advance(a, cfg)
    a("s_waitcnt lgkmcnt(0)")
    wreads(ph[1], cfg.fW1)
    mfmas(ph[0], cfg.fW0)
    a("s_waitcnt lgkmcnt(0)")
    mfmas(ph[1], cfg.fW1)

def emit_zero_acc(a, cfg, n):
    for r in range(n):
        a(f"v_mov_b32 v{cfg.acc + r}, 0")
```

```python
from asmlib import *
import os
NO_DMA = os.environ.get('NO_DMA')
NO_MFMA = os.environ.get('NO_MFMA')
NO_LDS = os.environ.get('NO_LDS')

class Cfg: pass

BSZ = 9216

def g2_ids(a):
    a("v_lshrrev_b32 v1, 6, v0")
    a("s_nop 0")
    a("v_readfirstlane_b32 s24, v1")
    a("v_and_b32 v0, 63, v0")

def stage_bytes(c):
    return c.TM * 64 + c.NK * BSZ

def g2_setup(a, c):
    NW, WM = c.NW, c.WM
    a(f"s_and_b32 s29, s24, {WM-1}")
    a(f"s_lshr_b32 s33, s24, {WM.bit_length()-1}")
    a("s_and_b32 s34, s24, 3")
    a("v_lshrrev_b32 v10, 2, v0")
    a("v_lshrrev_b32 v11, 4, v0")
    a("v_sub_u32 v11, 4, v11")
    a("v_and_b32 v11, 3, v11")
    a("v_and_b32 v12, 3, v0")
    a("v_xor_b32 v12, v12, v11")
    a("s_lshl_b32 s26, s24, 4")
    a("v_add_u32 v10, s26, v10")
    a(f"s_mov_b32 s26, {c.lda}")
    a("v_mul_lo_u32 v10, v10, s26")
    a("v_lshl_add_u32 v2, v12, 4, v10")
    a(f"v_add_u32 v3, {16*NW*c.lda}, v2")
    a("v_lshrrev_b32 v10, 3, v0")
    a("v_bfe_u32 v11, v0, 4, 1")
    a("s_and_b32 s26, s34, 1")
    a("s_lshl_b32 s26, s26, 1")
    a("v_or_b32 v11, s26, v11")
    a("v_bfe_u32 v12, v0, 1, 2")
    a("v_xor_b32 v12, v12, v11")
    a("v_and_b32 v13, 1, v0")
    a("v_lshlrev_b32 v13, 4, v13")
    a("v_lshl_add_u32 v13, v12, 5, v13")
    a("s_lshl_b32 s26, s34, 3")
    a("v_add_u32 v10, s26, v10")
    a(f"s_mov_b32 s26, {c.ldb}")
    a("v_mul_lo_u32 v10, v10, s26")
    a("v_add_u32 v4, v10, v13")
    a("v_lshrrev_b32 v10, 1, v0")
    a("s_lshl_b32 s26, s34, 3")
    a("v_add_u32 v10, s26, v10")
    a("s_and_b32 s26, s34, 1")
    a("s_lshl_b32 s26, s26, 2")
    a("v_xor_b32 v10, s26, v10")
    a(f"s_mov_b32 s26, {c.ldb}")
    a("v_mul_lo_u32 v10, v10, s26")
    a("v_and_b32 v11, 1, v0")
    a("v_lshl_add_u32 v10, v11, 4, v10")
    a("v_add_u32 v5, 256, v10")
    a("v_bfe_u32 v10, v0, 2, 2")
    a("v_sub_u32 v10, 4, v10")
    a("v_and_b32 v10, 3, v10")
    a("v_lshrrev_b32 v11, 4, v0")
    a("v_xor_b32 v10, v10, v11")
    a("v_and_b32 v11, 15, v0")
    a(f"s_mul_i32 s26, s29, {c.MT*16}")
    a("v_add_u32 v11, s26, v11")
    a("v_lshlrev_b32 v11, 6, v11")
    a(f"v_lshl_add_u32 v{c.vA}, v10, 4, v11")
    a(f"s_mul_i32 s26, s33, {BSZ}")
    a(f"s_add_u32 s26, s26, {c.TM*64}")
    a("v_lshrrev_b32 v10, 4, v0")
    a("v_bfe_u32 v11, v0, 2, 2")
    a("v_lshl_add_u32 v11, v10, 3, v11")
    a("v_and_b32 v12, 3, v0")
    a("v_lshlrev_b32 v13, 7, v11")
    a("v_lshl_add_u32 v13, v12, 3, v13")
    a("v_add_u32 v13, s26, v13")
    a("v_bfe_u32 v6, v0, 3, 1")
    a("v_and_b32 v7, 1, v10")
    a("v_lshl_or_b32 v6, v7, 1, v6")
    for j in range(4):
        a(f"v_xor_b32 v8, {j}, v6")
        a(f"v_lshl_add_u32 v{c.vB+j}, v8, 5, v13")
    a("v_lshlrev_b32 v13, 5, v11")
    a("v_lshl_add_u32 v13, v12, 3, v13")
    a("v_add_u32 v13, s26, v13")
    a("v_add_u32 v13, 8192, v13")
    a(f"v_lshl_add_u32 v{c.vS}, v7, 7, v13")
    a("v_xor_b32 v7, 1, v7")
    a(f"v_lshl_add_u32 v{c.vS+1}, v7, 7, v13")
    sb = stage_bytes(c)
    c.per_set = max(1, (65536 - 8192) // sb)
    c.nsets = (c.NST + c.per_set - 1) // c.per_set
    for s in range(1, c.nsets):
        off = s * c.per_set * sb
        a(f"v_add_u32 v{c.vA+s}, {off}, v{c.vA}")
        for t in range(6):
            a(f"v_add_u32 v{c.vX + (s-1)*6 + t}, {off}, v{c.vB+t}")
    a("s_lshl_b32 s25, s24, 10")
    a(f"s_mul_i32 s38, s33, {BSZ}")
    a(f"s_add_u32 s38, s38, {c.TM*64}")
    a("s_lshl_b32 s26, s34, 8")
    a("s_add_u32 s39, s38, s26")
    a("s_add_u32 s39, s39, 8192")
    a("s_lshl_b32 s26, s34, 10")
    a("s_add_u32 s38, s38, s26")

NDMA = 5
def g2_dma(a, c, stage):
    base = stage * stage_bytes(c)
    a(f"s_add_u32 m0, s25, {base}")
    a("s_nop 0")
    if not NO_DMA: a("buffer_load_dwordx4 v2, s[8:11], s26 offen lds")
    a(f"s_add_u32 m0, s25, {base + c.NW*1024}")
    a("s_nop 0")
    if not NO_DMA: a("buffer_load_dwordx4 v3, s[8:11], s26 offen lds")
    a(f"s_add_u32 m0, s38, {base}")
    a("s_add_u32 s28, s27, 128")
    if not NO_DMA: a("buffer_load_dwordx4 v4, s[12:15], s27 offen lds")
    a(f"s_add_u32 m0, s38, {base + 4096}")
    a("s_nop 0")
    if not NO_DMA: a("buffer_load_dwordx4 v4, s[12:15], s28 offen lds")
    a(f"s_add_u32 m0, s39, {base}")
    a("s_mov_b64 exec, 0xffff")
    if not NO_DMA: a("buffer_load_dwordx4 v5, s[12:15], s27 offen lds")
    a("s_mov_b64 exec, -1")
    a("s_add_u32 s26, s26, 64")
    a(f"s_add_u32 s27, s27, {32*c.ldb}")

def g2_step(a, c, stage, issue_next, wait_n):
    setj = stage // c.per_set
    base = (stage % c.per_set) * stage_bytes(c)
    vA = c.vA + setj
    def vB(t):
        return (c.vB + t) if setj == 0 else (c.vX + (setj-1)*6 + t)
    MT = c.MT
    a(f"s_waitcnt vmcnt({wait_n})")
    a("s_barrier")
    for mt in range(MT):
        if not NO_LDS: a(f"ds_read_b128 {vr(c.fA + 4*mt, 4)}, v{vA} offset:{base + mt*1024}")
    def wreads(grp, fb):
        if NO_LDS: return
        for q in range(3):
            t = grp * 3 + q
            for h2 in range(2):
                if t < 8:
                    a(f"ds_read_b64_tr_b16 {vr(fb + 4*q + 2*h2, 2)}, v{vB(t&3)} offset:{base + (t>>2)*4096 + h2*512}")
                else:
                    a(f"ds_read_b64_tr_b16 {vr(fb + 4*q + 2*h2, 2)}, v{vB(4+h2)} offset:{base}")
    def mfmas(grp, fb):
        if NO_MFMA: return
        for q in range(3):
            t = grp * 3 + q
            for mt in range(MT):
                acc = c.acc + 4 * (t * MT + mt)
                a(f"v_mfma_f32_16x16x32_bf16 {vr(acc,4)}, {vr(fb+4*q,4)}, {vr(c.fA+4*mt,4)}, {vr(acc,4)}")
    wreads(0, c.fW0)
    if issue_next:
        g2_dma(a, c, (stage + c.NST - 1) % c.NST)
    a("s_waitcnt lgkmcnt(0)")
    wreads(1, c.fW1)
    mfmas(0, c.fW0)
    a("s_waitcnt lgkmcnt(0)")
    wreads(2, c.fW0)
    mfmas(1, c.fW1)
    a("s_waitcnt lgkmcnt(0)")
    mfmas(2, c.fW0)

def g2_mainloop_unrolled(a, c, nsteps):
    for st in range(c.NST - 1):
        g2_dma(a, c, st)
    for i in range(nsteps):
        g2_step(a, c, i % c.NST, i + c.NST - 1 < nsteps, NDMA * min(c.NST - 2, nsteps - 1 - i))
```

```python
from asmlib import *
from gemm2 import *
S, D, H, DH, F = 2048, 576, 32, 18, 4608
WS_H, WS_O, WS_P = 0x800000, 0x1A00000, 0x2000000

def head(a, name):
    emit_head(a, name)

def gen_gu2(a):
    name = "gu_kernel"
    head(a, name)
    c = Cfg()
    c.NW, c.WM, c.MT, c.NK, c.TM, c.NST = 8, 4, 4, 2, 256, 4
    c.lda, c.ldb = D * 2, F * 2
    c.vA, c.vB, c.vS, c.vX = 14, 20, 24, 30
    c.fA, c.fW0, c.fW1 = 60, 76, 88
    c.acc = 100
    NWG = 256
    a(f"s_cmp_ge_u32 s2, {NWG}")
    a("s_cbranch_scc1 gu_done")
    a("s_load_dwordx2 s[4:5], s[0:1], 0")
    a("s_load_dwordx4 s[40:43], s[0:1], 32")
    a("s_load_dwordx2 s[44:45], s[0:1], 80")
    g2_ids(a)
    a("s_and_b32 s30, s2, 7")
    a("s_lshl_b32 s30, s30, 5")
    a("s_lshr_b32 s31, s2, 3")
    a("s_add_u32 s30, s30, s31")
    a("s_lshr_b32 s31, s30, 3")
    a("s_and_b32 s30, s30, 7")
    a("s_waitcnt lgkmcnt(0)")
    srd(a, 8, 4, S * D * 2)
    a("s_cmp_lt_u32 s24, 4")
    a("s_cselect_b32 s12, s40, s42")
    a("s_cselect_b32 s13, s41, s43")
    a(f"s_mov_b32 s14, {D*F*2}")
    a("s_mov_b32 s15, 0x00020000")
    srd(a, 20, 44, S * F * 2, WS_H)
    g2_setup(a, c)
    a(f"s_mul_i32 s26, s30, {256 * D * 2}")
    a("s_mul_i32 s27, s31, 288")
    for r in range(144):
        a(f"v_mov_b32 v{c.acc+r}, 0")
    g2_mainloop_unrolled(a, c, D // 32)
    a("s_nop 15")
    a("s_nop 7")
    a("s_barrier")
    a("v_and_b32 v10, 15, v0")
    a("s_lshl_b32 s26, s29, 6")
    a("v_add_u32 v10, s26, v10")
    a("v_mul_u32_u24 v10, 288, v10")
    a("v_lshrrev_b32 v11, 4, v0")
    a("v_lshl_add_u32 v10, v11, 3, v10")
    a("s_mul_i32 s26, s33, 73728")
    a("v_add_u32 v10, s26, v10")
    for t in range(9):
        for mt in range(4):
            acc = c.acc + 4 * (t * 4 + mt)
            tmp = 60 + 2 * ((t * 4 + mt) % 8)
            a(f"v_cvt_pk_bf16_f32 v{tmp}, v{acc}, v{acc+1}")
            a(f"v_cvt_pk_bf16_f32 v{tmp+1}, v{acc+2}, v{acc+3}")
            a(f"ds_write_b64 v10, {vr(tmp,2)} offset:{mt*16*288 + t*32}")
    a("s_waitcnt lgkmcnt(0)")
    a("s_barrier")
    a("s_lshl_b32 s26, s24, 6")
    a("v_add_u32 v10, s26, v0")
    a("s_mov_b32 s34, 3641")
    a(f"s_mul_i32 s26, s30, {256 * F * 2}")
    a("s_mul_i32 s27, s31, 288")
    a("s_add_u32 s26, s26, s27")
    a(f"s_mov_b32 s27, {F*2}")
    for it in range(9):
        b = 60 + 24 * (it % 3)
        a(f"v_add_u32 v11, {it*512}, v10")
        a("v_mul_lo_u32 v12, v11, s34")
        a("v_lshrrev_b32 v12, 16, v12")
        a("v_mul_u32_u24 v13, 18, v12")
        a("v_sub_u32 v13, v11, v13")
        a("v_lshlrev_b32 v11, 4, v11")
        a(f"ds_read_b128 {vr(b,4)}, v11")
        a(f"v_add_u32 v11, 73728, v11")
        a(f"ds_read_b128 {vr(b+4,4)}, v11")
        a("v_mul_lo_u32 v12, v12, s27")
        a(f"v_lshl_add_u32 v{b+20}, v13, 4, v12")
        a("s_waitcnt lgkmcnt(0)")
        for q in range(4):
            a(f"v_lshlrev_b32 v{b+8}, 16, v{b+q}")
            a(f"v_and_b32 v{b+9}, 0xffff0000, v{b+q}")
            a(f"v_lshlrev_b32 v{b+10}, 16, v{b+4+q}")
            a(f"v_and_b32 v{b+11}, 0xffff0000, v{b+4+q}")
            a(f"v_mul_f32 v{b+8}, v{b+8}, v{b+10}")
            a(f"v_mul_f32 v{b+9}, v{b+9}, v{b+11}")
            a(f"v_cvt_pk_bf16_f32 v{b+16+q}, v{b+8}, v{b+9}")
        a(f"buffer_store_dwordx4 {vr(b+16,4)}, v{b+20}, s[20:23], s26 offen")
    a.label("gu_done")
    a("s_endpgm")
    return name, NWG, 147456, 244, 512

def gen_down(a):
    name = "down_kernel"
    head(a, name)
    c = Cfg()
    c.NW, c.WM, c.MT, c.NK, c.TM, c.NST = 4, 4, 2, 1, 128, 4
    c.lda, c.ldb = F * 2, D * 2
    c.vA, c.vB, c.vS, c.vX = 14, 16, 20, 22
    c.fA, c.fW0, c.fW1 = 6, 28, 40
    c.acc = 52
    NWG = 256
    a(f"s_cmp_ge_u32 s2, {NWG}")
    a("s_cbranch_scc1 down_done")
    a("s_load_dwordx2 s[40:41], s[0:1], 48")
    a("s_load_dwordx2 s[44:45], s[0:1], 80")
    g2_ids(a)
    a("s_and_b32 s30, s2, 7")
    a("s_lshl_b32 s30, s30, 5")
    a("s_lshr_b32 s31, s2, 3")
    a("s_add_u32 s30, s30, s31")
    a("s_and_b32 s31, s30, 3")
    a("s_lshr_b32 s32, s30, 6")
    a("s_bfe_u32 s30, s30, 0x40002")
    a("s_waitcnt lgkmcnt(0)")
    srd(a, 8, 44, S * F * 2, WS_H)
    srd(a, 12, 40, F * D * 2)
    srd(a, 20, 44, 4 * S * D * 4, WS_P)
    g2_setup(a, c)
    a(f"s_mul_i32 s26, s30, {128 * F * 2}")
    a("s_mul_i32 s27, s32, 2304")
    a("s_add_u32 s26, s26, s27")
    a(f"s_mul_i32 s27, s32, {1152 * D * 2}")
    a("s_mul_i32 s28, s31, 288")
    a("s_add_u32 s27, s27, s28")
    for r in range(72):
        a(f"v_mov_b32 v{c.acc+r}, 0")
    g2_mainloop_unrolled(a, c, 36)
    a("s_nop 15")
    a("s_nop 7")
    a("v_and_b32 v10, 15, v0")
    a("s_lshl_b32 s26, s29, 5")
    a("v_add_u32 v10, s26, v10")
    a("v_mul_u32_u24 v10, 2304, v10")
    a("v_lshrrev_b32 v11, 4, v0")
    a("v_lshl_add_u32 v10, v11, 4, v10")
    a("s_lshl_b32 s26, s32, 11")
    a("s_lshl_b32 s27, s30, 7")
    a("s_add_u32 s26, s26, s27")
    a("s_mul_i32 s26, s26, 2304")
    a("s_mul_i32 s27, s31, 576")
    a("s_add_u32 s26, s26, s27")
    a(f"s_add_u32 s27, s26, {16*2304}")
    for t in range(9):
        for mt in range(2):
            acc = c.acc + 4 * (t * 2 + mt)
            a(f"buffer_store_dwordx4 {vr(acc,4)}, v10, s[20:23], s{26+mt} offen offset:{t*64}")
    a.label("down_done")
    a("s_endpgm")
    return name, NWG, c.NST * stage_bytes(c), 124, 256
```

```python
import sys, math, os
from asmlib import *
from gemm import *
from attn import gen_attn
from final import gen_final
from k2 import gen_gu2, gen_down

S, D, H, DH, F = 2048, 576, 32, 18, 4608
WS_QM, WS_QT, WS_KM, WS_KT, WS_VT = 0x0, 0x200000, 0x240000, 0x440000, 0x480000
WS_H, WS_O = 0x800000, 0x1A00000
WS_SIZE = 268435456
QSCALE = math.log2(math.e) / math.sqrt(DH)

def f32bits(x):
    import struct
    return struct.unpack("<I", struct.pack("<f", x))[0]

def kernel_head(a, name):
    emit_head(a, name)

def gen_gu(a):
    name = "gu_kernel"
    kernel_head(a, name)
    cfg = GemmCfg()
    cfg.TM, cfg.MT, cfg.NTW, cfg.NSUB = 128, 4, 4, 4
    cfg.lda, cfg.ldb = D * 2, F * 2
    cfg.vA, cfg.vB = 6, 14
    cfg.fA, cfg.fW0, cfg.fW1 = 20, 36, 52
    cfg.acc = 68
    cfg.sub_srd = [12, 12, 16, 16]
    cfg.sub_soff = [27, 28, 27, 28]
    cfg.phases = [[(t, 0, t) for t in range(4)], [(t, 8192, 4 + t) for t in range(4)]]
    cfg.swap = lambda g: True
    cfg.NST = NST = int(os.environ.get('GU_NST', '3'))
    cfg.vBx = 200
    NWG = 16 * 36
    a(f"s_cmp_ge_u32 s2, {NWG}")
    a("s_cbranch_scc1 gu_done")
    a("s_load_dwordx2 s[4:5], s[0:1], 0")
    a("s_load_dwordx4 s[40:43], s[0:1], 32")
    a("s_load_dwordx2 s[44:45], s[0:1], 80")
    gemm_prologue_ids(a, cfg)
    a("s_and_b32 s30, s2, 7")
    a("s_mul_i32 s30, s30, 72")
    a("s_lshr_b32 s31, s2, 3")
    a("s_add_u32 s30, s30, s31")
    a("s_lshr_b32 s31, s30, 4")
    a("s_and_b32 s30, s30, 15")
    a("s_waitcnt lgkmcnt(0)")
    srd(a, 8, 4, S * D * 2)
    srd(a, 12, 40, D * F * 2)
    srd(a, 16, 42, D * F * 2)
    srd(a, 20, 44, S * F * 2, WS_H)
    gemm_setup_addrs(a, cfg)
    setup_regsets(a, cfg)
    a(f"s_mul_i32 s26, s30, {128 * D * 2}")
    a("s_lshl_b32 s27, s31, 8")
    a("s_add_u32 s28, s27, 128")
    emit_zero_acc(a, cfg, 128)
    nsteps = D // 32
    for st in range(NST - 1):
        emit_dma(a, cfg, st); emit_advance(a, cfg)
    nd = ndma(cfg)
    for i in range(nsteps):
        issue = i + NST - 1 < nsteps
        wait = nd * min(NST - 2, nsteps - 1 - i)
        emit_step(a, cfg, i % NST, issue, wait)
    a("s_nop 15")
    a("s_nop 7")
    a("v_and_b32 v10, 15, v0")
    a("s_lshr_b32 s26, s24, 1")
    a("s_lshl_b32 s26, s26, 6")
    a("v_add_u32 v10, s26, v10")
    a(f"s_mov_b32 s26, {F*2}")
    a("v_mul_lo_u32 v10, v10, s26")
    a("v_lshrrev_b32 v11, 4, v0")
    a("v_lshlrev_b32 v11, 3, v11")
    a("s_and_b32 s26, s24, 1")
    a("s_lshl_b32 s26, s26, 7")
    a("v_add3_u32 v10, v10, v11, s26")
    a(f"s_mul_i32 s26, s30, {128 * F * 2}")
    a("s_lshl_b32 s27, s31, 8")
    a("s_add_u32 s26, s26, s27")
    for mt in range(4):
        for t in range(4):
            g = cfg.acc + 4 * (t * 4 + mt)
            u = cfg.acc + 4 * ((4 + t) * 4 + mt)
            tmp = 20 + 8 * ((mt * 4 + t) % 4)
            for p in range(2):
                a(f"v_cvt_pk_bf16_f32 v{tmp+2}, v{g+2*p}, v{g+2*p+1}")
                a(f"v_cvt_pk_bf16_f32 v{tmp+3}, v{u+2*p}, v{u+2*p+1}")
                a(f"v_lshlrev_b32 v{tmp+4}, 16, v{tmp+2}")
                a(f"v_and_b32 v{tmp+5}, 0xffff0000, v{tmp+2}")
                a(f"v_lshlrev_b32 v{tmp+6}, 16, v{tmp+3}")
                a(f"v_and_b32 v{tmp+7}, 0xffff0000, v{tmp+3}")
                a(f"v_mul_f32 v{tmp+4}, v{tmp+4}, v{tmp+6}")
                a(f"v_mul_f32 v{tmp+5}, v{tmp+5}, v{tmp+7}")
                a(f"v_cvt_pk_bf16_f32 v{tmp+p}, v{tmp+4}, v{tmp+5}")
            if not os.environ.get('NO_ST'): a(f"buffer_store_dwordx2 {vr(tmp,2)}, v10, s[20:23], s26 offen offset:{t*32}")
        if mt < 3:
            a(f"s_add_u32 s26, s26, {16 * F * 2}")
    a.label("gu_done")
    a("s_endpgm")
    return name, NWG, NST * stage_bytes(cfg), 220

def gen_qkv(a):
    name = "qkv_kernel"
    kernel_head(a, name)
    cfg = GemmCfg()
    cfg.TM, cfg.MT, cfg.NTW, cfg.NSUB = 128, 4, 6, 3
    cfg.lda, cfg.ldb = D * 2, 3 * D * 2
    cfg.vA, cfg.vB = 6, 14
    cfg.fA, cfg.fW0, cfg.fW1 = 20, 36, 48
    cfg.acc = 60
    cfg.sub_srd = [12, 12, 12]
    cfg.sub_soff = [27, 28, 29]
    cfg.phases = [[(t, 0, t) for t in range(3)], [(t, 0, t) for t in range(3, 6)]]
    NWG = 16 * 9
    a(f"s_cmp_ge_u32 s2, {NWG}")
    a("s_cbranch_scc1 qkv_done")
    a("s_load_dwordx4 s[4:7], s[0:1], 0")
    a("s_load_dwordx2 s[44:45], s[0:1], 80")
    gemm_prologue_ids(a, cfg)
    a("s_and_b32 s30, s2, 7")
    a("s_mul_i32 s30, s30, 18")
    a("s_lshr_b32 s31, s2, 3")
    a("s_add_u32 s30, s30, s31")
    a("s_lshr_b32 s31, s30, 4")
    a("s_and_b32 s30, s30, 15")
    a("s_waitcnt lgkmcnt(0)")
    srd(a, 8, 4, S * D * 2)
    srd(a, 12, 6, D * 3 * D * 2)
    srd(a, 20, 44, WS_H)
    gemm_setup_addrs(a, cfg)
    a(f"s_mul_i32 s26, s30, {128 * D * 2}")
    a("s_mul_i32 s27, s31, 384")
    a("s_add_u32 s28, s27, 128")
    a("s_add_u32 s29, s27, 256")
    emit_zero_acc(a, cfg, 96)
    nsteps = D // 32
    nd = ndma(cfg)
    a("s_cmp_ge_u32 s31, 6")
    a("s_cbranch_scc1 qkv_vpath")
    for path in ("qk", "v"):
        if path == "v":
            a.label("qkv_vpath")
        cfg.swap = (lambda g: True) if path == "qk" else (lambda g: False)
        emit_dma(a, cfg, 0); emit_advance(a, cfg)
        emit_dma(a, cfg, 1); emit_advance(a, cfg)
        for i in range(nsteps):
            emit_step(a, cfg, i % NSTAGE, i + 2 < nsteps, nd if i + 1 < nsteps else 0)
        a("s_nop 15")
        a("s_nop 7")
        a("s_mul_i32 s26, s31, 171")
        a("s_lshr_b32 s26, s26, 9")
        a("s_mul_i32 s27, s26, 3")
        a("s_sub_u32 s27, s31, s27")
        a("s_mul_i32 s27, s27, 192")
        a("s_and_b32 s28, s24, 1")
        a("s_mul_i32 s28, s28, 96")
        a("s_add_u32 s27, s27, s28")
        a("s_lshr_b32 s28, s24, 1")
        a("s_lshl_b32 s28, s28, 6")
        a("s_lshl_b32 s29, s30, 7")
        a("s_add_u32 s28, s28, s29")
        if path == "qk":
            a(f"s_mul_i32 s26, s26, {WS_KM}")
            a(f"s_mov_b32 s33, {f32bits(QSCALE):#x}")
            a("s_mov_b32 s34, 1.0")
            a("s_cmp_eq_u32 s26, 0")
            a("s_cselect_b32 s33, s33, s34")
            a("s_mov_b32 s34, 3641")
            a("v_and_b32 v10, 15, v0")
            a("v_add_u32 v10, s28, v10")
            a("v_lshrrev_b32 v11, 4, v0")
            a("v_lshlrev_b32 v11, 2, v11")
            a("v_add_u32 v11, s27, v11")
            for t in range(6):
                for ps in range(2):
                    a(f"v_add_u32 v12, {t*16 + ps*2}, v11")
                    a("v_mul_lo_u32 v13, v12, s34")
                    a("v_lshrrev_b32 v13, 16, v13")
                    a("v_mul_u32_u24 v2, 18, v13")
                    a("v_sub_u32 v12, v12, v2")
                    a("v_lshrrev_b32 v2, 3, v12")
                    a("v_lshl_add_u32 v2, v13, 1, v2")
                    a("v_lshlrev_b32 v2, 15, v2")
                    a("v_and_b32 v3, 7, v12")
                    a("v_lshl_add_u32 v2, v3, 1, v2")
                    a("v_lshlrev_b32 v3, 13, v13")
                    a(f"v_add_u32 v3, {WS_QT}, v3")
                    a("v_cmp_lt_u32 vcc, 15, v12")
                    a("v_mov_b32 v4, 4")
                    a("v_mov_b32 v5, 2")
                    a("v_cndmask_b32 v2, v2, v3, vcc")
                    a("v_cndmask_b32 v4, v4, v5, vcc")
                    for mt in range(4):
                        acc = cfg.acc + 4 * (t * 4 + mt) + 2 * ps
                        tmp = 20 + 4 * (mt % 4)
                        a(f"v_mul_f32 v{tmp}, s33, v{acc}")
                        a(f"v_mul_f32 v{tmp+1}, s33, v{acc+1}")
                        a(f"v_cvt_pk_bf16_f32 v{tmp}, v{tmp}, v{tmp+1}")
                        a(f"v_add_u32 v{tmp+2}, {mt*16}, v10")
                        a(f"v_lshlrev_b32 v{tmp+2}, v4, v{tmp+2}")
                        a(f"v_add_u32 v{tmp+2}, v{tmp+2}, v2")
                        a(f"buffer_store_dword v{tmp}, v{tmp+2}, s[20:23], s26 offen")
            a("s_branch qkv_done")
        else:
            a("v_and_b32 v10, 15, v0")
            a("v_add_u32 v10, s27, v10")
            a("v_lshlrev_b32 v10, 12, v10")
            a("v_bfe_u32 v11, v0, 4, 1")
            a("v_lshrrev_b32 v12, 5, v0")
            a("v_lshlrev_b32 v11, 4, v11")
            a("v_lshl_add_u32 v11, v12, 3, v11")
            a("v_add_u32 v10, v10, v11")
            a("s_lshl_b32 s26, s28, 1")
            a(f"s_add_u32 s26, s26, {WS_VT}")
            for t in range(6):
                if t:
                    a(f"v_add_u32 v10, {16*4096}, v10")
                for mt in range(4):
                    acc = cfg.acc + 4 * (t * 4 + mt)
                    tmp = 20 + 2 * ((t * 4 + mt) % 8)
                    a(f"v_cvt_pk_bf16_f32 v{tmp}, v{acc}, v{acc+1}")
                    a(f"v_cvt_pk_bf16_f32 v{tmp+1}, v{acc+2}, v{acc+3}")
                    a(f"buffer_store_dwordx2 {vr(tmp,2)}, v10, s[20:23], s26 offen offset:{mt*32}")
    a.label("qkv_done")
    a("s_endpgm")
    return name, NWG, NSTAGE * stage_bytes(cfg), 156

def merged(name, ga, gb, narrowA):
    def f(a):
        a(f".globl {name}"); a(".p2align 8"); a(f".type {name},@function"); a.label(name)
        tmp = Asm(); NOHEAD[0] = True
        ra = ga(tmp); rb = gb(tmp); NOHEAD[0] = False
        NA = ra[1]
        a(f"s_cmp_lt_u32 s2, {NA}")
        a(f"s_cbranch_scc1 {name}_A")
        a(f"s_sub_u32 s2, s2, {NA}")
        a(f"s_branch {rb[0]}_body")
        a.label(f"{name}_A")
        if narrowA:
            a("v_cmp_lt_u32 vcc, 255, v0")
            a(f"s_cbranch_vccnz {name}_exit")
        a(f"s_branch {ra[0]}_body")
        a.label(f"{name}_exit")
        a("s_endpgm")
        a.lines += tmp.lines
        return name, NA + rb[1], max(ra[2], rb[2]), max(ra[3], rb[3]), 512
    return f

def merged2(name, ga, gb):
    def f(a):
        a(f".globl {name}"); a(".p2align 8"); a(f".type {name},@function"); a.label(name)
        tmp = Asm(); NOHEAD[0] = True
        ra = ga(tmp); rb = gb(tmp); NOHEAD[0] = False
        NA = ra[1]
        a(f"s_cmp_lt_u32 s2, {NA}")
        a(f"s_cbranch_scc1 {name}_A")
        a(f"s_sub_u32 s2, s2, {NA}")
        a("v_cmp_lt_u32 vcc, 255, v0")
        a(f"s_cbranch_vccnz {name}_exit")
        a(f"s_branch {rb[0]}_body")
        a.label(f"{name}_A")
        a(f"s_branch {ra[0]}_body")
        a.label(f"{name}_exit")
        a("s_endpgm")
        a.lines += tmp.lines
        return name, NA + rb[1], max(ra[2], rb[2]), max(ra[3], rb[3]), 512
    return f

def build(which):
    a = Asm()
    kernels = []
    for g in which:
        kernels.append(g(a))
    hdr = open("gated_mix__mha_block__glu_gated_bilinear__prompt.s.ref").read().split("\n")
    head = [l for l in hdr if l.startswith(";") and "@launch" not in l and "Override launch" not in l and "grid=ceil" not in l]
    out = "\n".join(head) + "\n"
    kernels = [k if len(k) == 5 else (*k, 256) for k in kernels]
    for (name, nwg, lds, vg, blk) in kernels:
        out += f"; @launch kernel={name} grid=({nwg},1,1) block=({blk},1,1) lds={lds}\n"
    out += '.amdgcn_target "amdgcn-amd-amdhsa--gfx950"\n.text\n'
    out += a.text()
    for (name, nwg, lds, vg, blk) in kernels:
        out += kernel_desc(name, vg)
    return out

if __name__ == "__main__":
    txt = build([merged('l1_kernel', gen_qkv, gen_gu2, True), merged2('l2_kernel', gen_attn, gen_down), gen_final])
    open(sys.argv[1] if len(sys.argv) > 1 else "dev.s", "w").write(txt)
```

```python
from asmlib import *
from gemm import *
S, D, H, DH, F = 2048, 576, 32, 18, 4608
WS_H, WS_O, WS_P = 0x800000, 0x1A00000, 0x2000000

def gen_final(a):
    name = "final_kernel"
    emit_head(a, name)
    cfg = GemmCfg()
    cfg.TM, cfg.MT, cfg.NTW, cfg.NSUB = 64, 2, 3, 2
    cfg.half_last_sub = True
    cfg.NST = NST = 6
    cfg.vBx = 224
    cfg.lda, cfg.ldb = D * 2, D * 2
    cfg.vA, cfg.vB = 6, 14
    cfg.fA, cfg.fW0, cfg.fW1 = 20, 28, 36
    cfg.acc = 40
    APK = 64
    cfg.sub_srd = [12, 12]
    cfg.sub_soff = [27, 28]
    cfg.phases = [[(0, 0, 0), (1, 0, 1)], [(2, 0, 2)]]
    cfg.swap = lambda g: True
    LG = NST * stage_bytes(cfg)
    NWG = 32 * 6
    a(f"s_cmp_ge_u32 s2, {NWG}")
    a("s_cbranch_scc1 fin_done")
    a("s_load_dwordx2 s[4:5], s[0:1], 0")
    a("s_load_dwordx2 s[6:7], s[0:1], 16")
    a("s_load_dwordx4 s[40:43], s[0:1], 48")
    a("s_load_dwordx2 s[46:47], s[0:1], 64")
    a("s_load_dwordx2 s[44:45], s[0:1], 80")
    gemm_prologue_ids(a, cfg)
    a("s_and_b32 s30, s2, 7")
    a("s_mul_i32 s30, s30, 24")
    a("s_lshr_b32 s31, s2, 3")
    a("s_add_u32 s30, s30, s31")
    a("s_lshr_b32 s31, s30, 5")
    a("s_and_b32 s30, s30, 31")
    a("s_waitcnt lgkmcnt(0)")
    srd(a, 8, 44, S * D * 2, WS_O)
    srd(a, 12, 6, D * D * 2)
    srd(a, 16, 44, 4 * S * D * 4, WS_P)
    srd(a, 20, 40, F * D * 2)
    srd(a, 48, 44, S * 4, 0x700000)
    srd(a, 52, 42, D * 2)
    srd(a, 56, 46, S * D * 2)
    cfg.lda = F * 2
    gemm_setup_addrs(a, cfg)
    a("v_mov_b32 v3, v2")
    cfg.lda = D * 2
    gemm_setup_addrs(a, cfg)
    setup_regsets(a, cfg)
    a(f"s_mul_i32 s26, s30, {64 * D * 2}")
    a("s_mul_i32 s27, s31, 192")
    a("s_add_u32 s28, s27, 128")
    emit_zero_acc(a, cfg, 24)
    nd = ndma(cfg)
    n1, n2 = D // 32, F // 32
    for st in range(NST - 1):
        emit_dma(a, cfg, st); emit_advance(a, cfg)
    WN = nd * (NST - 2)
    a("v_and_b32 v13, 15, v0")
    a("s_lshr_b32 s33, s24, 1")
    a("s_lshl_b32 s33, s33, 5")
    a("s_lshl_b32 s34, s30, 6")
    a("s_add_u32 s33, s33, s34")
    a("v_add_u32 v13, s33, v13")
    a("v_lshlrev_b32 v13, 2, v13")
    a("buffer_load_dword v76, v13, s[48:51], 0 offen")
    a("buffer_load_dword v77, v13, s[48:51], 0 offen offset:64")
    a("s_mov_b32 s60, s26")
    a("s_mov_b32 s61, s27")
    a("s_mov_b32 s62, s28")
    a("v_and_b32 v10, 15, v0")
    a("s_lshr_b32 s26, s24, 1")
    a("s_lshl_b32 s26, s26, 5")
    a("v_add_u32 v10, s26, v10")
    a("v_mul_u32_u24 v10, 2304, v10")
    a("v_lshrrev_b32 v11, 4, v0")
    a("v_lshlrev_b32 v11, 4, v11")
    a("s_and_b32 s26, s24, 1")
    a("s_mul_i32 s26, s26, 192")
    a("v_add3_u32 v10, v10, v11, s26")
    a(f"s_mul_i32 s26, s30, {64*2304}")
    a("s_mul_i32 s27, s31, 384")
    a("s_add_u32 s26, s26, s27")
    PB = 80
    for sp in range(4):
        for mt in range(2):
            for t in range(3):
                idx = t * 2 + mt
                a(f"buffer_load_dwordx4 {vr(PB + sp*24 + idx*4, 4)}, v10, s[16:19], s26 offen offset:{t*64}")
            a(f"s_add_u32 s26, s26, {16*2304 if mt == 0 else 2048*2304 - 16*2304}")
    a("s_mov_b32 s26, s60")
    a("s_mov_b32 s27, s61")
    a("s_mov_b32 s28, s62")
    NPRE = 26
    for i in range(n1):
        emit_step(a, cfg, i % NST, i + NST - 1 < n1, nd * min(NST - 2, n1 - 1 - i) + (NPRE if i < NST - 1 else 0))
    a("s_nop 15")
    a("s_nop 7")
    for r in range(12):
        a(f"v_cvt_pk_bf16_f32 v{APK+r}, v{cfg.acc+2*r}, v{cfg.acc+2*r+1}")
    a("s_waitcnt vmcnt(0)")
    for r in range(24):
        a(f"v_add_f32 v{PB+r}, v{PB+r}, v{PB+24+r}")
        a(f"v_add_f32 v{PB+48+r}, v{PB+48+r}, v{PB+72+r}")
    for r in range(24):
        a(f"v_add_f32 v{cfg.acc+r}, v{PB+r}, v{PB+48+r}")
    a("v_and_b32 v10, 15, v0")
    a("s_lshr_b32 s26, s24, 1")
    a("s_lshl_b32 s26, s26, 5")
    a("v_add_u32 v10, s26, v10")
    a("v_lshlrev_b32 v11, 2, v10")
    a("v_mov_b32 v12, v76")
    a("v_mov_b32 v13, v77")
    a(f"s_mov_b32 s26, {D*2}")
    a("v_mul_lo_u32 v10, v10, s26")
    a("v_lshrrev_b32 v11, 4, v0")
    a("v_lshlrev_b32 v11, 3, v11")
    a("s_and_b32 s26, s24, 1")
    a("s_mul_i32 s26, s26, 96")
    a("v_add3_u32 v10, v10, v11, s26")
    a(f"s_mul_i32 s26, s30, {64*D*2}")
    a("s_mul_i32 s27, s31, 192")
    a("s_add_u32 s26, s26, s27")
    a("s_waitcnt lgkmcnt(0)")
    for mt in range(2):
        a(f"v_sub_f32 v{2+mt}, 1.0, v{12+mt}")
        a(f"v_cvt_pk_bf16_f32 v{2+mt}, v{2+mt}, v{2+mt}")
        a(f"v_lshlrev_b32 v{2+mt}, 16, v{2+mt}")
    for mt in range(2):
        for t in range(3):
            idx = t * 2 + mt
            o = 20 + 10 * (idx % 2)
            for p in range(2):
                apk = APK + idx * 2 + p
                acc = cfg.acc + idx * 4 + 2 * p
                a(f"v_lshlrev_b32 v{o+2}, 16, v{apk}")
                a(f"v_and_b32 v{o+3}, 0xffff0000, v{apk}")
                a(f"v_cvt_pk_bf16_f32 v{o+4}, v{acc}, v{acc+1}")
                a(f"v_lshlrev_b32 v{o+5}, 16, v{o+4}")
                a(f"v_and_b32 v{o+6}, 0xffff0000, v{o+4}")
                a(f"v_mul_f32 v{o+2}, v{12+mt}, v{o+2}")
                a(f"v_mul_f32 v{o+3}, v{12+mt}, v{o+3}")
                a(f"v_mul_f32 v{o+5}, v{2+mt}, v{o+5}")
                a(f"v_mul_f32 v{o+6}, v{2+mt}, v{o+6}")
                a(f"v_cvt_pk_bf16_f32 v{o+4}, v{o+2}, v{o+3}")
                a(f"v_cvt_pk_bf16_f32 v{o+7}, v{o+5}, v{o+6}")
                a(f"v_lshlrev_b32 v{o+2}, 16, v{o+4}")
                a(f"v_and_b32 v{o+3}, 0xffff0000, v{o+4}")
                a(f"v_lshlrev_b32 v{o+5}, 16, v{o+7}")
                a(f"v_and_b32 v{o+6}, 0xffff0000, v{o+7}")
                a(f"v_add_f32 v{o+2}, v{o+2}, v{o+5}")
                a(f"v_add_f32 v{o+3}, v{o+3}, v{o+6}")
                a(f"v_cvt_pk_bf16_f32 v{o+p}, v{o+2}, v{o+3}")
            a(f"buffer_store_dwordx2 {vr(o,2)}, v10, s[56:59], s26 offen offset:{t*32}")
        if mt == 0:
            a(f"s_add_u32 s26, s26, {16*D*2}")
    a.label("fin_done")
    a("s_endpgm")
    return name, NWG, LG + 256, 236
```

```python
from asmlib import *
import os
NO_DMA = os.environ.get('NO_DMA')
NO_MFMA = os.environ.get('NO_MFMA')
NO_LDS = os.environ.get('NO_LDS')

class Cfg: pass

BSZ = 9216

def g2_ids(a):
    a("v_lshrrev_b32 v1, 6, v0")
    a("s_nop 0")
    a("v_readfirstlane_b32 s24, v1")
    a("v_and_b32 v0, 63, v0")

def stage_bytes(c):
    return c.TM * 64 + c.NK * BSZ

def g2_setup(a, c):
    NW, WM = c.NW, c.WM
    a(f"s_and_b32 s29, s24, {WM-1}")
    a(f"s_lshr_b32 s33, s24, {WM.bit_length()-1}")
    a("s_and_b32 s34, s24, 3")
    a("v_lshrrev_b32 v10, 2, v0")
    a("v_lshrrev_b32 v11, 4, v0")
    a("v_sub_u32 v11, 4, v11")
    a("v_and_b32 v11, 3, v11")
    a("v_and_b32 v12, 3, v0")
    a("v_xor_b32 v12, v12, v11")
    a("s_lshl_b32 s26, s24, 4")
    a("v_add_u32 v10, s26, v10")
    a(f"s_mov_b32 s26, {c.lda}")
    a("v_mul_lo_u32 v10, v10, s26")
    a("v_lshl_add_u32 v2, v12, 4, v10")
    a(f"v_add_u32 v3, {16*NW*c.lda}, v2")
    a("v_lshrrev_b32 v10, 3, v0")
    a("v_bfe_u32 v11, v0, 4, 1")
    a("s_and_b32 s26, s34, 1")
    a("s_lshl_b32 s26, s26, 1")
    a("v_or_b32 v11, s26, v11")
    a("v_bfe_u32 v12, v0, 1, 2")
    a("v_xor_b32 v12, v12, v11")
    a("v_and_b32 v13, 1, v0")
    a("v_lshlrev_b32 v13, 4, v13")
    a("v_lshl_add_u32 v13, v12, 5, v13")
    a("s_lshl_b32 s26, s34, 3")
    a("v_add_u32 v10, s26, v10")
    a(f"s_mov_b32 s26, {c.ldb}")
    a("v_mul_lo_u32 v10, v10, s26")
    a("v_add_u32 v4, v10, v13")
    a("v_lshrrev_b32 v10, 1, v0")
    a("s_lshl_b32 s26, s34, 3")
    a("v_add_u32 v10, s26, v10")
    a("s_and_b32 s26, s34, 1")
    a("s_lshl_b32 s26, s26, 2")
    a("v_xor_b32 v10, s26, v10")
    a(f"s_mov_b32 s26, {c.ldb}")
    a("v_mul_lo_u32 v10, v10, s26")
    a("v_and_b32 v11, 1, v0")
    a("v_lshl_add_u32 v10, v11, 4, v10")
    a("v_add_u32 v5, 256, v10")
    a("v_bfe_u32 v10, v0, 2, 2")
    a("v_sub_u32 v10, 4, v10")
    a("v_and_b32 v10, 3, v10")
    a("v_lshrrev_b32 v11, 4, v0")
    a("v_xor_b32 v10, v10, v11")
    a("v_and_b32 v11, 15, v0")
    a(f"s_mul_i32 s26, s29, {c.MT*16}")
    a("v_add_u32 v11, s26, v11")
    a("v_lshlrev_b32 v11, 6, v11")
    a(f"v_lshl_add_u32 v{c.vA}, v10, 4, v11")
    a(f"s_mul_i32 s26, s33, {BSZ}")
    a(f"s_add_u32 s26, s26, {c.TM*64}")
    a("v_lshrrev_b32 v10, 4, v0")
    a("v_bfe_u32 v11, v0, 2, 2")
    a("v_lshl_add_u32 v11, v10, 3, v11")
    a("v_and_b32 v12, 3, v0")
    a("v_lshlrev_b32 v13, 7, v11")
    a("v_lshl_add_u32 v13, v12, 3, v13")
    a("v_add_u32 v13, s26, v13")
    a("v_bfe_u32 v6, v0, 3, 1")
    a("v_and_b32 v7, 1, v10")
    a("v_lshl_or_b32 v6, v7, 1, v6")
    for j in range(4):
        a(f"v_xor_b32 v8, {j}, v6")
        a(f"v_lshl_add_u32 v{c.vB+j}, v8, 5, v13")
    a("v_lshlrev_b32 v13, 5, v11")
    a("v_lshl_add_u32 v13, v12, 3, v13")
    a("v_add_u32 v13, s26, v13")
    a("v_add_u32 v13, 8192, v13")
    a(f"v_lshl_add_u32 v{c.vS}, v7, 7, v13")
    a("v_xor_b32 v7, 1, v7")
    a(f"v_lshl_add_u32 v{c.vS+1}, v7, 7, v13")
    sb = stage_bytes(c)
    c.per_set = max(1, (65536 - 8192) // sb)
    c.nsets = (c.NST + c.per_set - 1) // c.per_set
    for s in range(1, c.nsets):
        off = s * c.per_set * sb
        a(f"v_add_u32 v{c.vA+s}, {off}, v{c.vA}")
        for t in range(6):
            a(f"v_add_u32 v{c.vX + (s-1)*6 + t}, {off}, v{c.vB+t}")
    a("s_lshl_b32 s25, s24, 10")
    a(f"s_mul_i32 s38, s33, {BSZ}")
    a(f"s_add_u32 s38, s38, {c.TM*64}")
    a("s_lshl_b32 s26, s34, 8")
    a("s_add_u32 s39, s38, s26")
    a("s_add_u32 s39, s39, 8192")
    a("s_lshl_b32 s26, s34, 10")
    a("s_add_u32 s38, s38, s26")

NDMA = 5
def g2_dma(a, c, stage):
    base = stage * stage_bytes(c)
    a(f"s_add_u32 m0, s25, {base}")
    a("s_nop 0")
    if not NO_DMA: a("buffer_load_dwordx4 v2, s[8:11], s26 offen lds")
    a(f"s_add_u32 m0, s25, {base + c.NW*1024}")
    a("s_nop 0")
    if not NO_DMA: a("buffer_load_dwordx4 v3, s[8:11], s26 offen lds")
    a(f"s_add_u32 m0, s38, {base}")
    a("s_add_u32 s28, s27, 128")
    if not NO_DMA: a("buffer_load_dwordx4 v4, s[12:15], s27 offen lds")
    a(f"s_add_u32 m0, s38, {base + 4096}")
    a("s_nop 0")
    if not NO_DMA: a("buffer_load_dwordx4 v4, s[12:15], s28 offen lds")
    a(f"s_add_u32 m0, s39, {base}")
    a("s_mov_b64 exec, 0xffff")
    if not NO_DMA: a("buffer_load_dwordx4 v5, s[12:15], s27 offen lds")
    a("s_mov_b64 exec, -1")
    a("s_add_u32 s26, s26, 64")
    a(f"s_add_u32 s27, s27, {32*c.ldb}")

def g2_step(a, c, stage, issue_next, wait_n):
    setj = stage // c.per_set
    base = (stage % c.per_set) * stage_bytes(c)
    vA = c.vA + setj
    def vB(t):
        return (c.vB + t) if setj == 0 else (c.vX + (setj-1)*6 + t)
    MT = c.MT
    a(f"s_waitcnt vmcnt({wait_n})")
    a("s_barrier")
    for mt in range(MT):
        if not NO_LDS: a(f"ds_read_b128 {vr(c.fA + 4*mt, 4)}, v{vA} offset:{base + mt*1024}")
    def wreads(grp, fb):
        if NO_LDS: return
        for q in range(3):
            t = grp * 3 + q
            for h2 in range(2):
                if t < 8:
                    a(f"ds_read_b64_tr_b16 {vr(fb + 4*q + 2*h2, 2)}, v{vB(t&3)} offset:{base + (t>>2)*4096 + h2*512}")
                else:
                    a(f"ds_read_b64_tr_b16 {vr(fb + 4*q + 2*h2, 2)}, v{vB(4+h2)} offset:{base}")
    def mfmas(grp, fb):
        if NO_MFMA: return
        for q in range(3):
            t = grp * 3 + q
            for mt in range(MT):
                acc = c.acc + 4 * (t * MT + mt)
                a(f"v_mfma_f32_16x16x32_bf16 {vr(acc,4)}, {vr(fb+4*q,4)}, {vr(c.fA+4*mt,4)}, {vr(acc,4)}")
    wreads(0, c.fW0)
    if issue_next:
        g2_dma(a, c, (stage + c.NST - 1) % c.NST)
    a("s_waitcnt lgkmcnt(0)")
    wreads(1, c.fW1)
    mfmas(0, c.fW0)
    a("s_waitcnt lgkmcnt(0)")
    wreads(2, c.fW0)
    mfmas(1, c.fW1)
    a("s_waitcnt lgkmcnt(0)")
    mfmas(2, c.fW0)

def g2_mainloop_unrolled(a, c, nsteps, prefetch=None):
    for st in range(c.NST - 1):
        g2_dma(a, c, st)
    npf = prefetch(a) if prefetch else 0
    for i in range(nsteps):
        extra = npf if i < c.NST - 1 else 0
        g2_step(a, c, i % c.NST, i + c.NST - 1 < nsteps, NDMA * min(c.NST - 2, nsteps - 1 - i) + extra)

def g2_mainloop(a, c, nsteps, tag, prefetch=None):
    N = c.NST
    for st in range(N - 1):
        g2_dma(a, c, st)
    npf = prefetch(a) if prefetch else 0
    full = NDMA * (N - 2)
    nissue = nsteps - (N - 1)
    head = N - 1 if npf else 0
    head += (nissue - head) % N
    iters = (nissue - head) // N
    for i in range(head):
        g2_step(a, c, i % N, True, full + (npf if i < N - 1 else 0))
    a("s_mov_b32 s37, 0")
    a.label(tag + "_loop")
    for j in range(N):
        g2_step(a, c, (head + j) % N, True, full)
    a("s_add_u32 s37, s37, 1")
    a(f"s_cmp_lt_u32 s37, {iters}")
    a(f"s_cbranch_scc1 {tag}_loop")
    for i in range(nissue, nsteps):
        g2_step(a, c, i % N, False, NDMA * (nsteps - 1 - i))
```

```python
from asmlib import *
from gemm2 import *
import os
NO_ST = os.environ.get('NO_ST')
S, D, H, DH, F = 2048, 576, 32, 18, 4608
WS_H, WS_O, WS_P = 0x800000, 0x1A00000, 0x2000000

def head(a, name):
    emit_head(a, name)

def gen_gu2(a):
    name = "gu_kernel"
    head(a, name)
    c = Cfg()
    c.NW, c.WM, c.MT, c.NK, c.TM, c.NST = 8, 4, 4, 2, 256, 4
    c.lda, c.ldb = D * 2, F * 2
    c.vA, c.vB, c.vS, c.vX = 14, 20, 24, 30
    c.fA, c.fW0, c.fW1 = 60, 76, 88
    c.acc = 100
    NWG = 256
    a(f"s_cmp_ge_u32 s2, {NWG}")
    a("s_cbranch_scc1 gu_done")
    a("s_load_dwordx2 s[4:5], s[0:1], 0")
    a("s_load_dwordx4 s[40:43], s[0:1], 32")
    a("s_load_dwordx2 s[44:45], s[0:1], 80")
    a("s_load_dwordx4 s[64:67], s[0:1], 8")
    a("s_load_dwordx2 s[68:69], s[0:1], 48")
    g2_ids(a)
    a("s_and_b32 s30, s2, 7")
    a("s_lshl_b32 s30, s30, 5")
    a("s_lshr_b32 s31, s2, 3")
    a("s_add_u32 s30, s30, s31")
    a("s_lshr_b32 s31, s30, 3")
    a("s_and_b32 s30, s30, 7")
    a("s_waitcnt lgkmcnt(0)")
    srd(a, 8, 4, S * D * 2)
    a("s_cmp_lt_u32 s24, 4")
    a("s_cselect_b32 s12, s40, s42")
    a("s_cselect_b32 s13, s41, s43")
    a(f"s_mov_b32 s14, {D*F*2}")
    a("s_mov_b32 s15, 0x00020000")
    srd(a, 20, 44, S * F * 2, WS_H)
    srd(a, 72, 64, D * 3 * D * 2)
    srd(a, 76, 66, D * D * 2)
    srd(a, 80, 68, F * D * 2)
    g2_setup(a, c)
    a(f"s_mul_i32 s26, s30, {256 * D * 2}")
    a("s_mul_i32 s27, s31, 288")
    for r in range(144):
        a(f"v_mov_b32 v{c.acc+r}, 0")
    def pf(a):
        a("v_lshrrev_b32 v6, 2, v0")
        a("s_and_b32 s46, s24, 3")
        a("s_mul_i32 s46, s46, 18")
        a("v_add_u32 v6, s46, v6")
        a("v_lshlrev_b32 v6, 3, v6")
        a("v_add_u32 v6, s30, v6")
        a(f"s_mov_b32 s46, {F*2}")
        a("v_mul_lo_u32 v6, v6, s46")
        a("v_and_b32 v7, 3, v0")
        a("v_mul_u32_u24 v7, 96, v7")
        a("v_min_u32 v7, 284, v7")
        a("v_add_u32 v6, v6, v7")
        a("s_mul_i32 s46, s31, 288")
        a("buffer_load_dword v8, v6, s[12:15], s46 offen")
        a(f"v_add_u32 v6, {16*8*F*2}, v6")
        a("v_cmp_gt_u32 vcc, 8, v0")
        a("v_mov_b32 v7, 0x7f000000")
        a("s_nop 1")
        a("v_cndmask_b32 v6, v7, v6, vcc")
        a("buffer_load_dword v9, v6, s[12:15], s46 offen")
        a("v_lshrrev_b32 v6, 4, v0")
        a("s_and_b32 s46, s31, 3")
        a("s_lshl_b32 s46, s46, 6")
        a("s_lshl_b32 s47, s24, 3")
        a("s_add_u32 s46, s46, s47")
        a("s_lshl_b32 s47, s30, 8")
        a("s_add_u32 s46, s46, s47")
        a("v_add_u32 v6, s46, v6")
        a("v_mul_u32_u24 v6, 1152, v6")
        a("v_and_b32 v7, 15, v0")
        a("v_lshl_add_u32 v6, v7, 7, v6")
        a("v_cmp_gt_u32 vcc, 9, v7")
        a("v_mov_b32 v7, 0x7f000000")
        a("s_nop 1")
        a("v_cndmask_b32 v6, v7, v6, vcc")
        a("buffer_load_dword v10, v6, s[8:11], 0 offen")
        a("s_movk_i32 s46, 4608")
        a("buffer_load_dword v11, v6, s[8:11], s46 offen")
        a("s_lshl_b32 s46, s2, 3")
        a("s_add_u32 s46, s46, s24")
        a("s_lshl_b32 s46, s46, 6")
        a("v_add_u32 v6, s46, v0")
        a("v_lshlrev_b32 v6, 7, v6")
        a("buffer_load_dword v12, v6, s[72:75], 0 offen")
        a("buffer_load_dword v13, v6, s[76:79], 0 offen")
        a("buffer_load_dword v9, v6, s[80:83], 0 offen")
        return 7
    g2_mainloop(a, c, D // 32, 'gu', pf)
    a("s_nop 15")
    a("s_nop 7")
    a("s_barrier")
    a("v_and_b32 v10, 15, v0")
    a("s_lshl_b32 s26, s29, 6")
    a("v_add_u32 v10, s26, v10")
    a("v_mul_u32_u24 v10, 288, v10")
    a("v_lshrrev_b32 v11, 4, v0")
    a("v_lshl_add_u32 v10, v11, 3, v10")
    a("s_mul_i32 s26, s33, 73728")
    a("v_add_u32 v10, s26, v10")
    for t in range(9):
        for mt in range(4):
            acc = c.acc + 4 * (t * 4 + mt)
            tmp = 60 + 2 * ((t * 4 + mt) % 8)
            a(f"v_cvt_pk_bf16_f32 v{tmp}, v{acc}, v{acc+1}")
            a(f"v_cvt_pk_bf16_f32 v{tmp+1}, v{acc+2}, v{acc+3}")
            a(f"ds_write_b64 v10, {vr(tmp,2)} offset:{mt*16*288 + t*32}")
    a("s_waitcnt lgkmcnt(0)")
    a("s_barrier")
    a("s_lshl_b32 s26, s24, 6")
    a("v_add_u32 v10, s26, v0")
    a("s_mov_b32 s34, 3641")
    a(f"s_mul_i32 s26, s30, {256 * F * 2}")
    a("s_mul_i32 s27, s31, 288")
    a("s_add_u32 s26, s26, s27")
    a(f"s_mov_b32 s27, {F*2}")
    for it in range(9):
        b = 60 + 24 * (it % 3)
        a(f"v_add_u32 v11, {it*512}, v10")
        a("v_mul_lo_u32 v12, v11, s34")
        a("v_lshrrev_b32 v12, 16, v12")
        a("v_mul_u32_u24 v13, 18, v12")
        a("v_sub_u32 v13, v11, v13")
        a("v_lshlrev_b32 v11, 4, v11")
        a(f"ds_read_b128 {vr(b,4)}, v11")
        a(f"v_add_u32 v11, 73728, v11")
        a(f"ds_read_b128 {vr(b+4,4)}, v11")
        a("v_mul_lo_u32 v12, v12, s27")
        a(f"v_lshl_add_u32 v{b+20}, v13, 4, v12")
        a("s_waitcnt lgkmcnt(0)")
        for q in range(4):
            a(f"v_lshlrev_b32 v{b+8}, 16, v{b+q}")
            a(f"v_and_b32 v{b+9}, 0xffff0000, v{b+q}")
            a(f"v_lshlrev_b32 v{b+10}, 16, v{b+4+q}")
            a(f"v_and_b32 v{b+11}, 0xffff0000, v{b+4+q}")
            a(f"v_mul_f32 v{b+8}, v{b+8}, v{b+10}")
            a(f"v_mul_f32 v{b+9}, v{b+9}, v{b+11}")
            a(f"v_cvt_pk_bf16_f32 v{b+16+q}, v{b+8}, v{b+9}")
        if not NO_ST: a(f"buffer_store_dwordx4 {vr(b+16,4)}, v{b+20}, s[20:23], s26 offen")
    a.label("gu_done")
    a("s_endpgm")
    return name, NWG, 147456, 244, 512

def gen_down(a):
    name = "down_kernel"
    head(a, name)
    c = Cfg()
    c.NW, c.WM, c.MT, c.NK, c.TM, c.NST = 4, 4, 2, 1, 128, 4
    c.lda, c.ldb = F * 2, D * 2
    c.vA, c.vB, c.vS, c.vX = 14, 16, 20, 22
    c.fA, c.fW0, c.fW1 = 6, 28, 40
    c.acc = 52
    NWG = 256
    a(f"s_cmp_ge_u32 s2, {NWG}")
    a("s_cbranch_scc1 down_done")
    a("s_load_dwordx2 s[40:41], s[0:1], 48")
    a("s_load_dwordx2 s[44:45], s[0:1], 80")
    g2_ids(a)
    a("s_and_b32 s30, s2, 7")
    a("s_lshl_b32 s30, s30, 5")
    a("s_lshr_b32 s31, s2, 3")
    a("s_add_u32 s30, s30, s31")
    a("s_and_b32 s31, s30, 3")
    a("s_lshr_b32 s32, s30, 6")
    a("s_bfe_u32 s30, s30, 0x40002")
    a("s_waitcnt lgkmcnt(0)")
    srd(a, 8, 44, S * F * 2, WS_H)
    srd(a, 12, 40, F * D * 2)
    srd(a, 20, 44, 4 * S * D * 4, WS_P)
    g2_setup(a, c)
    a(f"s_mul_i32 s26, s30, {128 * F * 2}")
    a("s_mul_i32 s27, s32, 2304")
    a("s_add_u32 s26, s26, s27")
    a(f"s_mul_i32 s27, s32, {1152 * D * 2}")
    a("s_mul_i32 s28, s31, 288")
    a("s_add_u32 s27, s27, s28")
    for r in range(72):
        a(f"v_mov_b32 v{c.acc+r}, 0")
    g2_mainloop(a, c, 36, 'down')
    a("s_nop 15")
    a("s_nop 7")
    a("v_and_b32 v10, 15, v0")
    a("s_lshl_b32 s26, s29, 5")
    a("v_add_u32 v10, s26, v10")
    a("v_mul_u32_u24 v10, 2304, v10")
    a("v_lshrrev_b32 v11, 4, v0")
    a("v_lshl_add_u32 v10, v11, 4, v10")
    a("s_lshl_b32 s26, s32, 11")
    a("s_lshl_b32 s27, s30, 7")
    a("s_add_u32 s26, s26, s27")
    a("s_mul_i32 s26, s26, 2304")
    a("s_mul_i32 s27, s31, 576")
    a("s_add_u32 s26, s26, s27")
    a(f"s_add_u32 s27, s26, {16*2304}")
    for t in range(9):
        for mt in range(2):
            acc = c.acc + 4 * (t * 2 + mt)
            if not NO_ST: a(f"buffer_store_dwordx4 {vr(acc,4)}, v10, s[20:23], s{26+mt} offen offset:{t*64}")
    a("s_or_b32 s26, s31, s32")
    a("s_cmp_lg_u32 s26, 0")
    a("s_cbranch_scc1 down_done")
    a("s_load_dwordx2 s[46:47], s[0:1], 56")
    a("s_load_dwordx2 s[48:49], s[0:1], 0")
    a("s_waitcnt lgkmcnt(0) vmcnt(0)")
    srd(a, 52, 46, D * 2)
    srd(a, 56, 48, S * D * 2)
    srd(a, 60, 44, S * 4, 0x700000)
    GW, XB = 20, 60
    a("v_and_b32 v11, 3, v0")
    a("v_mul_u32_u24 v11, 288, v11")
    for ps in range(2):
        a("v_lshrrev_b32 v10, 2, v0")
        a("s_lshl_b32 s33, s24, 5")
        a("s_lshl_b32 s34, s30, 7")
        a("s_add_u32 s33, s33, s34")
        a(f"s_add_u32 s33, s33, {16*ps}")
        a("v_add_u32 v13, s33, v10")
        a("v_mul_u32_u24 v10, 1152, v13")
        a("v_add_u32 v10, v10, v11")
        a("v_mov_b32 v12, 0")
        for hf in range(2):
            for j in range(9):
                a(f"buffer_load_dwordx4 {vr(GW+4*j,4)}, v11, s[52:55], 0 offen offset:{144*hf + 16*j}")
                a(f"buffer_load_dwordx4 {vr(XB+4*j,4)}, v10, s[56:59], 0 offen offset:{144*hf + 16*j}")
            a("s_waitcnt vmcnt(0)")
            for j in range(36):
                a(f"v_dot2_f32_bf16 v12, v{XB+j}, v{GW+j}, v12")
        a("s_nop 3")
        a("v_add_f32 v12, v12, v12 quad_perm:[1,0,3,2] row_mask:0xf bank_mask:0xf")
        a("s_nop 1")
        a("v_add_f32 v12, v12, v12 quad_perm:[2,3,0,1] row_mask:0xf bank_mask:0xf")
        a("v_cvt_pk_bf16_f32 v12, v12, v12")
        a("v_lshlrev_b32 v12, 16, v12")
        a("v_mul_f32 v12, 0xbfb8aa3b, v12")
        a("v_exp_f32 v12, v12")
        a("s_nop 0")
        a("v_add_f32 v12, 1.0, v12")
        a("v_rcp_f32 v12, v12")
        a("s_nop 0")
        a("v_cvt_pk_bf16_f32 v12, v12, v12")
        a("v_lshlrev_b32 v12, 16, v12")
        a("v_lshlrev_b32 v13, 2, v13")
        a("buffer_store_dword v12, v13, s[60:63], 0 offen")
    a.label("down_done")
    a("s_endpgm")
    return name, NWG, c.NST * stage_bytes(c), 124, 256
```

```python
import sys, math, os
from asmlib import *
from gemm import *
from attn import gen_attn
from final import gen_final
from k2 import gen_gu2, gen_down

S, D, H, DH, F = 2048, 576, 32, 18, 4608
WS_QM, WS_QT, WS_KM, WS_KT, WS_VT = 0x0, 0x200000, 0x240000, 0x440000, 0x480000
WS_H, WS_O = 0x800000, 0x1A00000
WS_G = 0x700000
WS_SIZE = 268435456
QSCALE = math.log2(math.e) / math.sqrt(DH)

def f32bits(x):
    import struct
    return struct.unpack("<I", struct.pack("<f", x))[0]

def kernel_head(a, name):
    emit_head(a, name)

def gen_gu(a):
    name = "gu_kernel"
    kernel_head(a, name)
    cfg = GemmCfg()
    cfg.TM, cfg.MT, cfg.NTW, cfg.NSUB = 128, 4, 4, 4
    cfg.lda, cfg.ldb = D * 2, F * 2
    cfg.vA, cfg.vB = 6, 14
    cfg.fA, cfg.fW0, cfg.fW1 = 20, 36, 52
    cfg.acc = 68
    cfg.sub_srd = [12, 12, 16, 16]
    cfg.sub_soff = [27, 28, 27, 28]
    cfg.phases = [[(t, 0, t) for t in range(4)], [(t, 8192, 4 + t) for t in range(4)]]
    cfg.swap = lambda g: True
    cfg.NST = NST = int(os.environ.get('GU_NST', '3'))
    cfg.vBx = 200
    NWG = 16 * 36
    a(f"s_cmp_ge_u32 s2, {NWG}")
    a("s_cbranch_scc1 gu_done")
    a("s_load_dwordx2 s[4:5], s[0:1], 0")
    a("s_load_dwordx4 s[40:43], s[0:1], 32")
    a("s_load_dwordx2 s[44:45], s[0:1], 80")
    gemm_prologue_ids(a, cfg)
    a("s_and_b32 s30, s2, 7")
    a("s_mul_i32 s30, s30, 72")
    a("s_lshr_b32 s31, s2, 3")
    a("s_add_u32 s30, s30, s31")
    a("s_lshr_b32 s31, s30, 4")
    a("s_and_b32 s30, s30, 15")
    a("s_waitcnt lgkmcnt(0)")
    srd(a, 8, 4, S * D * 2)
    srd(a, 12, 40, D * F * 2)
    srd(a, 16, 42, D * F * 2)
    srd(a, 20, 44, S * F * 2, WS_H)
    gemm_setup_addrs(a, cfg)
    setup_regsets(a, cfg)
    a(f"s_mul_i32 s26, s30, {128 * D * 2}")
    a("s_lshl_b32 s27, s31, 8")
    a("s_add_u32 s28, s27, 128")
    emit_zero_acc(a, cfg, 128)
    nsteps = D // 32
    for st in range(NST - 1):
        emit_dma(a, cfg, st); emit_advance(a, cfg)
    nd = ndma(cfg)
    for i in range(nsteps):
        issue = i + NST - 1 < nsteps
        wait = nd * min(NST - 2, nsteps - 1 - i)
        emit_step(a, cfg, i % NST, issue, wait)
    a("s_nop 15")
    a("s_nop 7")
    a("v_and_b32 v10, 15, v0")
    a("s_lshr_b32 s26, s24, 1")
    a("s_lshl_b32 s26, s26, 6")
    a("v_add_u32 v10, s26, v10")
    a(f"s_mov_b32 s26, {F*2}")
    a("v_mul_lo_u32 v10, v10, s26")
    a("v_lshrrev_b32 v11, 4, v0")
    a("v_lshlrev_b32 v11, 3, v11")
    a("s_and_b32 s26, s24, 1")
    a("s_lshl_b32 s26, s26, 7")
    a("v_add3_u32 v10, v10, v11, s26")
    a(f"s_mul_i32 s26, s30, {128 * F * 2}")
    a("s_lshl_b32 s27, s31, 8")
    a("s_add_u32 s26, s26, s27")
    for mt in range(4):
        for t in range(4):
            g = cfg.acc + 4 * (t * 4 + mt)
            u = cfg.acc + 4 * ((4 + t) * 4 + mt)
            tmp = 20 + 8 * ((mt * 4 + t) % 4)
            for p in range(2):
                a(f"v_cvt_pk_bf16_f32 v{tmp+2}, v{g+2*p}, v{g+2*p+1}")
                a(f"v_cvt_pk_bf16_f32 v{tmp+3}, v{u+2*p}, v{u+2*p+1}")
                a(f"v_lshlrev_b32 v{tmp+4}, 16, v{tmp+2}")
                a(f"v_and_b32 v{tmp+5}, 0xffff0000, v{tmp+2}")
                a(f"v_lshlrev_b32 v{tmp+6}, 16, v{tmp+3}")
                a(f"v_and_b32 v{tmp+7}, 0xffff0000, v{tmp+3}")
                a(f"v_mul_f32 v{tmp+4}, v{tmp+4}, v{tmp+6}")
                a(f"v_mul_f32 v{tmp+5}, v{tmp+5}, v{tmp+7}")
                a(f"v_cvt_pk_bf16_f32 v{tmp+p}, v{tmp+4}, v{tmp+5}")
            if not os.environ.get('NO_ST'): a(f"buffer_store_dwordx2 {vr(tmp,2)}, v10, s[20:23], s26 offen offset:{t*32}")
        if mt < 3:
            a(f"s_add_u32 s26, s26, {16 * F * 2}")
    a.label("gu_done")
    a("s_endpgm")
    return name, NWG, NST * stage_bytes(cfg), 220

def gen_qkv(a):
    name = "qkv_kernel"
    kernel_head(a, name)
    cfg = GemmCfg()
    cfg.TM, cfg.MT, cfg.NTW, cfg.NSUB = 128, 4, 6, 3
    cfg.lda, cfg.ldb = D * 2, 3 * D * 2
    cfg.vA, cfg.vB = 6, 14
    cfg.fA, cfg.fW0, cfg.fW1 = 20, 36, 48
    cfg.acc = 60
    cfg.sub_srd = [12, 12, 12]
    cfg.sub_soff = [27, 28, 29]
    cfg.phases = [[(t, 0, t) for t in range(3)], [(t, 0, t) for t in range(3, 6)]]
    NWG = 16 * 9
    a(f"s_cmp_ge_u32 s2, {NWG}")
    a("s_cbranch_scc1 qkv_done")
    a("s_load_dwordx4 s[4:7], s[0:1], 0")
    a("s_load_dwordx2 s[44:45], s[0:1], 80")
    gemm_prologue_ids(a, cfg)
    a("s_and_b32 s30, s2, 7")
    a("s_mul_i32 s30, s30, 18")
    a("s_lshr_b32 s31, s2, 3")
    a("s_add_u32 s30, s30, s31")
    a("s_lshr_b32 s31, s30, 4")
    a("s_and_b32 s30, s30, 15")
    a("s_waitcnt lgkmcnt(0)")
    srd(a, 8, 4, S * D * 2)
    srd(a, 12, 6, D * 3 * D * 2)
    srd(a, 20, 44, WS_H)
    gemm_setup_addrs(a, cfg)
    a(f"s_mul_i32 s26, s30, {128 * D * 2}")
    a("s_mul_i32 s27, s31, 384")
    a("s_add_u32 s28, s27, 128")
    a("s_add_u32 s29, s27, 256")
    emit_zero_acc(a, cfg, 96)
    nsteps = D // 32
    nd = ndma(cfg)
    a("s_cmp_ge_u32 s31, 6")
    a("s_cbranch_scc1 qkv_vpath")
    for path in ("qk", "v"):
        if path == "v":
            a.label("qkv_vpath")
        cfg.swap = (lambda g: True) if path == "qk" else (lambda g: False)
        emit_dma(a, cfg, 0); emit_advance(a, cfg)
        emit_dma(a, cfg, 1); emit_advance(a, cfg)
        for i in range(nsteps):
            emit_step(a, cfg, i % NSTAGE, i + 2 < nsteps, nd if i + 1 < nsteps else 0)
        a("s_nop 15")
        a("s_nop 7")
        a("s_mul_i32 s26, s31, 171")
        a("s_lshr_b32 s26, s26, 9")
        a("s_mul_i32 s27, s26, 3")
        a("s_sub_u32 s27, s31, s27")
        a("s_mul_i32 s27, s27, 192")
        a("s_and_b32 s28, s24, 1")
        a("s_mul_i32 s28, s28, 96")
        a("s_add_u32 s27, s27, s28")
        a("s_lshr_b32 s28, s24, 1")
        a("s_lshl_b32 s28, s28, 6")
        a("s_lshl_b32 s29, s30, 7")
        a("s_add_u32 s28, s28, s29")
        if path == "qk":
            a(f"s_mul_i32 s26, s26, {WS_KM}")
            a(f"s_mov_b32 s33, {f32bits(QSCALE):#x}")
            a("s_mov_b32 s34, 1.0")
            a("s_cmp_eq_u32 s26, 0")
            a("s_cselect_b32 s33, s33, s34")
            a("s_mov_b32 s34, 3641")
            a("v_and_b32 v10, 15, v0")
            a("v_add_u32 v10, s28, v10")
            a("v_lshrrev_b32 v11, 4, v0")
            a("v_lshlrev_b32 v11, 2, v11")
            a("v_add_u32 v11, s27, v11")
            for t in range(6):
                for ps in range(2):
                    a(f"v_add_u32 v12, {t*16 + ps*2}, v11")
                    a("v_mul_lo_u32 v13, v12, s34")
                    a("v_lshrrev_b32 v13, 16, v13")
                    a("v_mul_u32_u24 v2, 18, v13")
                    a("v_sub_u32 v12, v12, v2")
                    a("v_lshrrev_b32 v2, 3, v12")
                    a("v_lshl_add_u32 v2, v13, 1, v2")
                    a("v_lshlrev_b32 v2, 15, v2")
                    a("v_and_b32 v3, 7, v12")
                    a("v_lshl_add_u32 v2, v3, 1, v2")
                    a("v_lshlrev_b32 v3, 13, v13")
                    a(f"v_add_u32 v3, {WS_QT}, v3")
                    a("v_cmp_lt_u32 vcc, 15, v12")
                    a("v_mov_b32 v4, 4")
                    a("v_mov_b32 v5, 2")
                    a("v_cndmask_b32 v2, v2, v3, vcc")
                    a("v_cndmask_b32 v4, v4, v5, vcc")
                    for mt in range(4):
                        acc = cfg.acc + 4 * (t * 4 + mt) + 2 * ps
                        tmp = 20 + 4 * (mt % 4)
                        a(f"v_mul_f32 v{tmp}, s33, v{acc}")
                        a(f"v_mul_f32 v{tmp+1}, s33, v{acc+1}")
                        a(f"v_cvt_pk_bf16_f32 v{tmp}, v{tmp}, v{tmp+1}")
                        a(f"v_add_u32 v{tmp+2}, {mt*16}, v10")
                        a(f"v_lshlrev_b32 v{tmp+2}, v4, v{tmp+2}")
                        a(f"v_add_u32 v{tmp+2}, v{tmp+2}, v2")
                        a(f"buffer_store_dword v{tmp}, v{tmp+2}, s[20:23], s26 offen")
            a("s_branch qkv_done")
        else:
            a("v_and_b32 v10, 15, v0")
            a("v_add_u32 v10, s27, v10")
            a("v_lshlrev_b32 v10, 12, v10")
            a("v_bfe_u32 v11, v0, 4, 1")
            a("v_lshrrev_b32 v12, 5, v0")
            a("v_lshlrev_b32 v11, 4, v11")
            a("v_lshl_add_u32 v11, v12, 3, v11")
            a("v_add_u32 v10, v10, v11")
            a("s_lshl_b32 s26, s28, 1")
            a(f"s_add_u32 s26, s26, {WS_VT}")
            for t in range(6):
                if t:
                    a(f"v_add_u32 v10, {16*4096}, v10")
                for mt in range(4):
                    acc = cfg.acc + 4 * (t * 4 + mt)
                    tmp = 20 + 2 * ((t * 4 + mt) % 8)
                    a(f"v_cvt_pk_bf16_f32 v{tmp}, v{acc}, v{acc+1}")
                    a(f"v_cvt_pk_bf16_f32 v{tmp+1}, v{acc+2}, v{acc+3}")
                    a(f"buffer_store_dwordx2 {vr(tmp,2)}, v10, s[20:23], s26 offen offset:{mt*32}")
    a.label("qkv_done")
    a("s_endpgm")
    return name, NWG, NSTAGE * stage_bytes(cfg), 156

def merged(name, ga, gb, narrowA):
    def f(a):
        a(f".globl {name}"); a(".p2align 8"); a(f".type {name},@function"); a.label(name)
        tmp = Asm(); NOHEAD[0] = True
        ra = ga(tmp); rb = gb(tmp); NOHEAD[0] = False
        NA = ra[1]
        a(f"s_cmp_lt_u32 s2, {NA}")
        a(f"s_cbranch_scc1 {name}_A")
        a(f"s_sub_u32 s2, s2, {NA}")
        a(f"s_branch {rb[0]}_body")
        a.label(f"{name}_A")
        if narrowA:
            a("v_cmp_lt_u32 vcc, 255, v0")
            a(f"s_cbranch_vccnz {name}_exit")
        a(f"s_branch {ra[0]}_body")
        a.label(f"{name}_exit")
        a("s_endpgm")
        a.lines += tmp.lines
        return name, NA + rb[1], max(ra[2], rb[2]), max(ra[3], rb[3]), 512
    return f

def merged2(name, ga, gb):
    def f(a):
        a(f".globl {name}"); a(".p2align 8"); a(f".type {name},@function"); a.label(name)
        tmp = Asm(); NOHEAD[0] = True
        ra = ga(tmp); rb = gb(tmp); NOHEAD[0] = False
        NA = ra[1]
        a(f"s_cmp_lt_u32 s2, {NA}")
        a(f"s_cbranch_scc1 {name}_A")
        a(f"s_sub_u32 s2, s2, {NA}")
        a("v_cmp_lt_u32 vcc, 255, v0")
        a(f"s_cbranch_vccnz {name}_exit")
        a(f"s_branch {rb[0]}_body")
        a.label(f"{name}_A")
        a(f"s_branch {ra[0]}_body")
        a.label(f"{name}_exit")
        a("s_endpgm")
        a.lines += tmp.lines
        return name, NA + rb[1], max(ra[2], rb[2]), max(ra[3], rb[3]), 512
    return f

def build(which):
    a = Asm()
    kernels = []
    for g in which:
        kernels.append(g(a))
    hdr = open("gated_mix__mha_block__glu_gated_bilinear__prompt.s.ref").read().split("\n")
    head = [l for l in hdr if l.startswith(";") and "@launch" not in l and "Override launch" not in l and "grid=ceil" not in l]
    out = "\n".join(head) + "\n"
    kernels = [k if len(k) == 5 else (*k, 256) for k in kernels]
    for (name, nwg, lds, vg, blk) in kernels:
        out += f"; @launch kernel={name} grid=({nwg},1,1) block=({blk},1,1) lds={lds}\n"
    out += '.amdgcn_target "amdgcn-amd-amdhsa--gfx950"\n.text\n'
    out += a.text()
    for (name, nwg, lds, vg, blk) in kernels:
        out += kernel_desc(name, vg)
    return out

if __name__ == "__main__":
    if os.environ.get('SEP'):
        txt = build([gen_gu2, gen_down])
        open(sys.argv[1], "w").write(txt); sys.exit(0)
    txt = build([merged2('l1_kernel', gen_gu2, gen_qkv), merged2('l2_kernel', gen_attn, gen_down), gen_final])
    open(sys.argv[1] if len(sys.argv) > 1 else "dev.s", "w").write(txt)
```

```python
from asmlib import *
import os
NO_DMA = os.environ.get('NO_DMA')
NO_MFMA = os.environ.get('NO_MFMA')
NO_LDS = os.environ.get('NO_LDS')

class Cfg: pass
_lbl = 0

BSZ = 9216

def g2_ids(a):
    a("v_lshrrev_b32 v1, 6, v0")
    a("s_nop 0")
    a("v_readfirstlane_b32 s24, v1")
    a("v_and_b32 v0, 63, v0")

def stage_bytes(c):
    return c.TM * 64 + c.NK * BSZ

def g2_setup(a, c):
    NW, WM = c.NW, c.WM
    a(f"s_and_b32 s29, s24, {WM-1}")
    a(f"s_lshr_b32 s33, s24, {WM.bit_length()-1}")
    a("s_and_b32 s34, s24, 3")
    a("v_lshrrev_b32 v10, 2, v0")
    a("v_lshrrev_b32 v11, 4, v0")
    a("v_sub_u32 v11, 4, v11")
    a("v_and_b32 v11, 3, v11")
    a("v_and_b32 v12, 3, v0")
    a("v_xor_b32 v12, v12, v11")
    a("s_lshl_b32 s26, s24, 4")
    a("v_add_u32 v10, s26, v10")
    a(f"s_mov_b32 s26, {c.lda}")
    a("v_mul_lo_u32 v10, v10, s26")
    a("v_lshl_add_u32 v2, v12, 4, v10")
    a(f"v_add_u32 v3, {16*NW*c.lda}, v2")
    a("v_lshrrev_b32 v10, 3, v0")
    a("v_bfe_u32 v11, v0, 4, 1")
    a("s_and_b32 s26, s34, 1")
    a("s_lshl_b32 s26, s26, 1")
    a("v_or_b32 v11, s26, v11")
    a("v_bfe_u32 v12, v0, 1, 2")
    a("v_xor_b32 v12, v12, v11")
    a("v_and_b32 v13, 1, v0")
    a("v_lshlrev_b32 v13, 4, v13")
    a("v_lshl_add_u32 v13, v12, 5, v13")
    a("s_lshl_b32 s26, s34, 3")
    a("v_add_u32 v10, s26, v10")
    a(f"s_mov_b32 s26, {c.ldb}")
    a("v_mul_lo_u32 v10, v10, s26")
    a("v_add_u32 v4, v10, v13")
    a("v_lshrrev_b32 v10, 1, v0")
    a("s_lshl_b32 s26, s34, 3")
    a("v_add_u32 v10, s26, v10")
    a("s_and_b32 s26, s34, 1")
    a("s_lshl_b32 s26, s26, 2")
    a("v_xor_b32 v10, s26, v10")
    a(f"s_mov_b32 s26, {c.ldb}")
    a("v_mul_lo_u32 v10, v10, s26")
    a("v_and_b32 v11, 1, v0")
    a("v_lshl_add_u32 v10, v11, 4, v10")
    a("v_add_u32 v5, 256, v10")
    a("v_bfe_u32 v10, v0, 2, 2")
    a("v_sub_u32 v10, 4, v10")
    a("v_and_b32 v10, 3, v10")
    a("v_lshrrev_b32 v11, 4, v0")
    a("v_xor_b32 v10, v10, v11")
    a("v_and_b32 v11, 15, v0")
    a(f"s_mul_i32 s26, s29, {c.MT*16}")
    a("v_add_u32 v11, s26, v11")
    a("v_lshlrev_b32 v11, 6, v11")
    a(f"v_lshl_add_u32 v{c.vA}, v10, 4, v11")
    a(f"s_mul_i32 s26, s33, {BSZ}")
    a(f"s_add_u32 s26, s26, {c.TM*64}")
    a("v_lshrrev_b32 v10, 4, v0")
    a("v_bfe_u32 v11, v0, 2, 2")
    a("v_lshl_add_u32 v11, v10, 3, v11")
    a("v_and_b32 v12, 3, v0")
    a("v_lshlrev_b32 v13, 7, v11")
    a("v_lshl_add_u32 v13, v12, 3, v13")
    a("v_add_u32 v13, s26, v13")
    a("v_bfe_u32 v6, v0, 3, 1")
    a("v_and_b32 v7, 1, v10")
    a("v_lshl_or_b32 v6, v7, 1, v6")
    for j in range(4):
        a(f"v_xor_b32 v8, {j}, v6")
        a(f"v_lshl_add_u32 v{c.vB+j}, v8, 5, v13")
    a("v_lshlrev_b32 v13, 5, v11")
    a("v_lshl_add_u32 v13, v12, 3, v13")
    a("v_add_u32 v13, s26, v13")
    a("v_add_u32 v13, 8192, v13")
    a(f"v_lshl_add_u32 v{c.vS}, v7, 7, v13")
    a("v_xor_b32 v7, 1, v7")
    a(f"v_lshl_add_u32 v{c.vS+1}, v7, 7, v13")
    sb = stage_bytes(c)
    c.per_set = max(1, (65536 - 8192) // sb)
    c.nsets = (c.NST + c.per_set - 1) // c.per_set
    for s in range(1, c.nsets):
        off = s * c.per_set * sb
        a(f"v_add_u32 v{c.vA+s}, {off}, v{c.vA}")
        for t in range(6):
            a(f"v_add_u32 v{c.vX + (s-1)*6 + t}, {off}, v{c.vB+t}")
    a("s_lshl_b32 s25, s24, 10")
    a(f"s_mul_i32 s38, s33, {BSZ}")
    a(f"s_add_u32 s38, s38, {c.TM*64}")
    a("s_lshl_b32 s26, s34, 8")
    a("s_add_u32 s39, s38, s26")
    a("s_add_u32 s39, s39, 8192")
    a("s_lshl_b32 s26, s34, 10")
    a("s_add_u32 s38, s38, s26")

def ndma2(c):
    return 3 + c.TM // 16 // c.NW

def g2_dma(a, c, stage):
    base = stage * stage_bytes(c)
    a(f"s_add_u32 m0, s25, {base}")
    a("s_nop 0")
    if not NO_DMA: a("buffer_load_dwordx4 v2, s[8:11], s26 offen lds")
    if c.TM // 16 // c.NW == 2:
        a(f"s_add_u32 m0, s25, {base + c.NW*1024}")
        a("s_nop 0")
        if not NO_DMA: a("buffer_load_dwordx4 v3, s[8:11], s26 offen lds")
    a(f"s_add_u32 m0, s38, {base}")
    a("s_add_u32 s28, s27, 128")
    if not NO_DMA: a("buffer_load_dwordx4 v4, s[12:15], s27 offen lds")
    a(f"s_add_u32 m0, s38, {base + 4096}")
    a("s_nop 0")
    if not NO_DMA: a("buffer_load_dwordx4 v4, s[12:15], s28 offen lds")
    a(f"s_add_u32 m0, s39, {base}")
    a("s_mov_b64 exec, 0xffff")
    if not NO_DMA: a("buffer_load_dwordx4 v5, s[12:15], s27 offen lds")
    a("s_mov_b64 exec, -1")
    a("s_add_u32 s26, s26, 64")
    a(f"s_add_u32 s27, s27, {32*c.ldb}")

STAMP = os.environ.get('STAMP')
_st = [0]
def stamp(a):
    if not STAMP: return
    a("s_memtime s[98:99]")
    a("s_waitcnt lgkmcnt(0)")
    a(f"v_writelane_b32 v255, s98, {_st[0]}")
    _st[0] += 1

def g2_step(a, c, stage, issue_next, wait_n):
    setj = stage // c.per_set
    base = (stage % c.per_set) * stage_bytes(c)
    vA = c.vA + setj
    def vB(t):
        return (c.vB + t) if setj == 0 else (c.vX + (setj-1)*6 + t)
    MT = c.MT
    a(f"s_waitcnt vmcnt({wait_n})")
    if getattr(c, "stamps", False): stamp(a)
    a("s_barrier")
    for mt in range(MT):
        if not NO_LDS: a(f"ds_read_b128 {vr(c.fA + 4*mt, 4)}, v{vA} offset:{base + mt*1024}")
    def wreads(grp, fb):
        if NO_LDS: return
        for q in range(3):
            t = grp * 3 + q
            for h2 in range(2):
                if t < 8:
                    a(f"ds_read_b64_tr_b16 {vr(fb + 4*q + 2*h2, 2)}, v{vB(t&3)} offset:{base + (t>>2)*4096 + h2*512}")
                else:
                    a(f"ds_read_b64_tr_b16 {vr(fb + 4*q + 2*h2, 2)}, v{vB(4+h2)} offset:{base}")
    def mfmas(grp, fb):
        if NO_MFMA: return
        for q in range(3):
            t = grp * 3 + q
            for mt in range(MT):
                acc = c.acc + 4 * (t * MT + mt)
                a(f"v_mfma_f32_16x16x32_bf16 {vr(acc,4)}, {vr(fb+4*q,4)}, {vr(c.fA+4*mt,4)}, {vr(acc,4)}")
    stag = getattr(c, "stagger", False) and issue_next
    global _lbl
    wreads(0, c.fW0)
    if issue_next:
        if stag:
            _lbl += 1
            a("s_cmp_lt_u32 s24, 4")
            a(f"s_cbranch_scc0 g2skip{_lbl}")
        g2_dma(a, c, (stage + c.NST - 1) % c.NST)
        if stag:
            a.label(f"g2skip{_lbl}")
    a("s_waitcnt lgkmcnt(0)")
    wreads(1, c.fW1)
    mfmas(0, c.fW0)
    a("s_waitcnt lgkmcnt(0)")
    wreads(2, c.fW0)
    mfmas(1, c.fW1)
    a("s_waitcnt lgkmcnt(0)")
    if stag:
        _lbl += 1
        a("s_cmp_lt_u32 s24, 4")
        a(f"s_cbranch_scc1 g2skip{_lbl}")
        g2_dma(a, c, (stage + c.NST - 1) % c.NST)
        a.label(f"g2skip{_lbl}")
    mfmas(2, c.fW0)

def g2_mainloop_unrolled(a, c, nsteps, prefetch=None):
    for st in range(c.NST - 1):
        g2_dma(a, c, st)
    npf = prefetch(a) if prefetch else 0
    for i in range(nsteps):
        extra = npf if i < c.NST - 1 else 0
        g2_step(a, c, i % c.NST, i + c.NST - 1 < nsteps, ndma2(c) * min(c.NST - 2, nsteps - 1 - i) + extra)

def g2_mainloop(a, c, nsteps, tag, prefetch=None):
    N = c.NST
    for st in range(N - 1):
        g2_dma(a, c, st)
    npf = prefetch(a) if prefetch else 0
    full = ndma2(c) * (N - 2)
    nissue = nsteps - (N - 1)
    head = N - 1 if npf else 0
    head += (nissue - head) % N
    iters = (nissue - head) // N
    for i in range(head):
        g2_step(a, c, i % N, True, full + (npf if i < N - 1 else 0))
    a("s_mov_b32 s37, 0")
    a.label(tag + "_loop")
    for j in range(N):
        g2_step(a, c, (head + j) % N, True, full)
    a("s_add_u32 s37, s37, 1")
    a(f"s_cmp_lt_u32 s37, {iters}")
    a(f"s_cbranch_scc1 {tag}_loop")
    for i in range(nissue, nsteps):
        g2_step(a, c, i % N, False, ndma2(c) * (nsteps - 1 - i))
```

```python
from asmlib import *
from gemm2 import *
import os
NO_ST = os.environ.get('NO_ST')
S, D, H, DH, F = 2048, 576, 32, 18, 4608
WS_H, WS_O, WS_P = 0x800000, 0x1A00000, 0x2000000

def head(a, name):
    emit_head(a, name)

def gen_gu2(a):
    name = "gu_kernel"
    head(a, name)
    c = Cfg()
    c.NW, c.WM, c.MT, c.NK, c.TM, c.NST = 8, 4, 4, 2, 256, 4
    c.stagger = False
    c.lda, c.ldb = D * 2, F * 2
    c.vA, c.vB, c.vS, c.vX = 14, 20, 24, 30
    c.fA, c.fW0, c.fW1 = 60, 76, 88
    c.acc = 100
    NWG = 256
    a(f"s_cmp_ge_u32 s2, {NWG}")
    a("s_cbranch_scc1 gu_done")
    a("s_load_dwordx2 s[4:5], s[0:1], 0")
    a("s_load_dwordx4 s[40:43], s[0:1], 32")
    a("s_load_dwordx2 s[44:45], s[0:1], 80")
    a("s_load_dwordx4 s[64:67], s[0:1], 8")
    a("s_load_dwordx2 s[68:69], s[0:1], 48")
    g2_ids(a)
    a("s_and_b32 s30, s2, 7")
    a("s_lshl_b32 s30, s30, 5")
    a("s_lshr_b32 s31, s2, 3")
    a("s_add_u32 s30, s30, s31")
    a("s_lshr_b32 s31, s30, 3")
    a("s_and_b32 s30, s30, 7")
    a("s_waitcnt lgkmcnt(0)")
    srd(a, 8, 4, S * D * 2)
    a("s_cmp_lt_u32 s24, 4")
    a("s_cselect_b32 s12, s40, s42")
    a("s_cselect_b32 s13, s41, s43")
    a(f"s_mov_b32 s14, {D*F*2}")
    a("s_mov_b32 s15, 0x00020000")
    srd(a, 20, 44, S * F * 2, WS_H)
    srd(a, 72, 64, D * 3 * D * 2)
    srd(a, 76, 66, D * D * 2)
    srd(a, 80, 68, F * D * 2)
    g2_setup(a, c)
    a(f"s_mul_i32 s26, s30, {256 * D * 2}")
    a("s_mul_i32 s27, s31, 288")
    for r in range(144):
        a(f"v_mov_b32 v{c.acc+r}, 0")
    def pf(a):
        a("v_lshrrev_b32 v6, 2, v0")
        a("s_and_b32 s46, s24, 3")
        a("s_mul_i32 s46, s46, 18")
        a("v_add_u32 v6, s46, v6")
        a("v_lshlrev_b32 v6, 3, v6")
        a("v_add_u32 v6, s30, v6")
        a(f"s_mov_b32 s46, {F*2}")
        a("v_mul_lo_u32 v6, v6, s46")
        a("v_and_b32 v7, 3, v0")
        a("v_mul_u32_u24 v7, 96, v7")
        a("v_min_u32 v7, 284, v7")
        a("v_add_u32 v6, v6, v7")
        a("s_mul_i32 s46, s31, 288")
        a("buffer_load_dword v8, v6, s[12:15], s46 offen")
        a(f"v_add_u32 v6, {16*8*F*2}, v6")
        a("v_cmp_gt_u32 vcc, 8, v0")
        a("v_mov_b32 v7, 0x7f000000")
        a("s_nop 1")
        a("v_cndmask_b32 v6, v7, v6, vcc")
        a("buffer_load_dword v9, v6, s[12:15], s46 offen")
        return 2
    if STAMP:
        c.stamps = True
        stamp(a)
        g2_mainloop_unrolled(a, c, D // 32, pf)
        stamp(a)
    else:
        g2_mainloop(a, c, D // 32, 'gu', pf)
    a("s_lshl_b32 s46, s2, 3")
    a("s_add_u32 s46, s46, s24")
    a("s_lshl_b32 s46, s46, 6")
    a("v_add_u32 v6, s46, v0")
    a("v_lshlrev_b32 v6, 7, v6")
    a("buffer_load_dword v56, v6, s[72:75], 0 offen")
    a("buffer_load_dword v57, v6, s[76:79], 0 offen")
    a("buffer_load_dword v58, v6, s[80:83], 0 offen")
    a("s_nop 15")
    a("s_nop 7")
    a("s_barrier")
    a("v_and_b32 v10, 15, v0")
    a("s_lshl_b32 s26, s29, 6")
    a("v_add_u32 v10, s26, v10")
    a("v_mul_u32_u24 v10, 304, v10")
    a("v_lshrrev_b32 v11, 4, v0")
    a("v_lshl_add_u32 v10, v11, 3, v10")
    a("s_mul_i32 s26, s33, 77824")
    a("v_add_u32 v10, s26, v10")
    for t in range(9):
        for mt in range(4):
            acc = c.acc + 4 * (t * 4 + mt)
            tmp = 60 + 2 * ((t * 4 + mt) % 8)
            a(f"v_cvt_pk_bf16_f32 v{tmp}, v{acc}, v{acc+1}")
            a(f"v_cvt_pk_bf16_f32 v{tmp+1}, v{acc+2}, v{acc+3}")
            a(f"ds_write_b64 v10, {vr(tmp,2)} offset:{mt*16*304 + t*32}")
    a("s_waitcnt lgkmcnt(0)")
    a("s_barrier")
    a("s_lshl_b32 s26, s24, 6")
    a("v_add_u32 v10, s26, v0")
    a("s_mov_b32 s34, 3641")
    a(f"s_mul_i32 s26, s30, {256 * F * 2}")
    a("s_mul_i32 s27, s31, 288")
    a("s_add_u32 s26, s26, s27")
    a(f"s_mov_b32 s27, {F*2}")
    for it in range(9):
        a(f"v_add_u32 v11, {it*512}, v10")
        a("v_mul_lo_u32 v12, v11, s34")
        a("v_lshrrev_b32 v12, 16, v12")
        a("v_mul_u32_u24 v13, 18, v12")
        a("v_sub_u32 v13, v11, v13")
        a("v_mul_u32_u24 v11, 304, v12")
        a("v_lshl_add_u32 v11, v13, 4, v11")
        a(f"ds_read_b128 {vr(100+8*it,4)}, v11")
        a(f"v_add_u32 v11, 77824, v11")
        a(f"ds_read_b128 {vr(104+8*it,4)}, v11")
        a("v_mul_lo_u32 v12, v12, s27")
        a(f"v_lshl_add_u32 v{180+it}, v13, 4, v12")
    for it in range(9):
        b = 100 + 8 * it
        o = 60 + 4 * it
        a(f"s_waitcnt lgkmcnt({min(15, 2*(8-it))})")
        for q in range(4):
            a(f"v_lshlrev_b32 v20, 16, v{b+q}")
            a(f"v_and_b32 v21, 0xffff0000, v{b+q}")
            a(f"v_lshlrev_b32 v22, 16, v{b+4+q}")
            a(f"v_and_b32 v23, 0xffff0000, v{b+4+q}")
            a(f"v_mul_f32 v20, v20, v22")
            a(f"v_mul_f32 v21, v21, v23")
            a(f"v_cvt_pk_bf16_f32 v{o+q}, v20, v21")
        if not NO_ST: a(f"buffer_store_dwordx4 {vr(o,4)}, v{180+it}, s[20:23], s26 offen")
    if STAMP:
        stamp(a)
        a("s_waitcnt vmcnt(0)")
        stamp(a)
        a("s_cmp_lg_u32 s2, 5")
        a("s_cbranch_scc1 gu_done")
        a("s_cmp_lg_u32 s24, 0")
        a("s_cbranch_scc1 gu_done")
        a("s_load_dwordx2 s[46:47], s[0:1], 72")
        a("s_waitcnt lgkmcnt(0)")
        srd(a, 52, 46, 256)
        a("v_lshlrev_b32 v10, 2, v0")
        a("buffer_store_dword v255, v10, s[52:55], 0 offen")
    a.label("gu_done")
    a("s_endpgm")
    return name, NWG, 155648, 256 if STAMP else 244, 512

def gen_gus(a):
    name = "gus_kernel"
    head(a, name)
    c = Cfg()
    c.NW, c.WM, c.MT, c.NK, c.TM, c.NST = 8, 4, 2, 2, 128, 3
    c.lda, c.ldb = D * 2, F * 2
    c.vA, c.vB, c.vS, c.vX = 14, 16, 20, 22
    c.fA, c.fW0, c.fW1 = 6, 28, 40
    c.acc = 52
    NWG = 512
    a(f"s_cmp_ge_u32 s2, {NWG}")
    a("s_cbranch_scc1 gus_done")
    a("s_load_dwordx2 s[4:5], s[0:1], 0")
    a("s_load_dwordx4 s[40:43], s[0:1], 32")
    a("s_load_dwordx2 s[44:45], s[0:1], 80")
    a("s_load_dwordx4 s[64:67], s[0:1], 8")
    a("s_load_dwordx2 s[68:69], s[0:1], 48")
    g2_ids(a)
    a("s_and_b32 s30, s2, 7")
    a("s_lshl_b32 s30, s30, 6")
    a("s_lshr_b32 s31, s2, 3")
    a("s_add_u32 s30, s30, s31")
    a("s_lshr_b32 s31, s30, 4")
    a("s_and_b32 s30, s30, 15")
    a("s_waitcnt lgkmcnt(0)")
    srd(a, 8, 4, S * D * 2)
    a("s_cmp_lt_u32 s24, 4")
    a("s_cselect_b32 s12, s40, s42")
    a("s_cselect_b32 s13, s41, s43")
    a(f"s_mov_b32 s14, {D*F*2}")
    a("s_mov_b32 s15, 0x00020000")
    srd(a, 20, 44, S * F * 2, WS_H)
    srd(a, 72, 64, D * 3 * D * 2)
    srd(a, 76, 66, D * D * 2)
    srd(a, 80, 68, F * D * 2)
    g2_setup(a, c)
    a(f"s_mul_i32 s26, s30, {128 * D * 2}")
    a("s_mul_i32 s27, s31, 288")
    for r in range(72):
        a(f"v_mov_b32 v{c.acc+r}, 0")
    g2_mainloop(a, c, D // 32, 'gus')
    a("s_nop 15")
    a("s_nop 7")
    a("s_barrier")
    a("v_and_b32 v10, 15, v0")
    a("s_lshl_b32 s26, s29, 5")
    a("v_add_u32 v10, s26, v10")
    a("v_mul_u32_u24 v10, 288, v10")
    a("v_lshrrev_b32 v11, 4, v0")
    a("v_lshl_add_u32 v10, v11, 3, v10")
    a("s_mul_i32 s26, s33, 36864")
    a("v_add_u32 v10, s26, v10")
    for t in range(9):
        for mt in range(2):
            acc = c.acc + 4 * (t * 2 + mt)
            tmp = 28 + 2 * ((t * 2 + mt) % 8)
            a(f"v_cvt_pk_bf16_f32 v{tmp}, v{acc}, v{acc+1}")
            a(f"v_cvt_pk_bf16_f32 v{tmp+1}, v{acc+2}, v{acc+3}")
            a(f"ds_write_b64 v10, {vr(tmp,2)} offset:{mt*16*288 + t*32}")
    a("s_waitcnt lgkmcnt(0)")
    a("s_barrier")
    a("s_lshl_b32 s26, s24, 6")
    a("v_add_u32 v10, s26, v0")
    a("s_mov_b32 s34, 3641")
    a(f"s_mul_i32 s26, s30, {128 * F * 2}")
    a("s_mul_i32 s27, s31, 288")
    a("s_add_u32 s26, s26, s27")
    a(f"s_mov_b32 s27, {F*2}")
    for it in range(5):
        b = 28 + 24 * (it % 3)
        a(f"v_add_u32 v11, {it*512}, v10")
        a("v_mul_lo_u32 v12, v11, s34")
        a("v_lshrrev_b32 v12, 16, v12")
        a("v_mul_u32_u24 v13, 18, v12")
        a("v_sub_u32 v13, v11, v13")
        a("v_lshlrev_b32 v11, 4, v11")
        a(f"ds_read_b128 {vr(b,4)}, v11")
        a(f"v_add_u32 v11, 36864, v11")
        a(f"ds_read_b128 {vr(b+4,4)}, v11")
        a("v_mul_lo_u32 v12, v12, s27")
        a(f"v_lshl_add_u32 v{b+20}, v13, 4, v12")
        if it == 4:
            a("v_cmp_gt_u32 vcc, 256, v10")
            a("v_mov_b32 v12, 0x7f000000")
            a("s_nop 1")
            a(f"v_cndmask_b32 v{b+20}, v12, v{b+20}, vcc")
        a("s_waitcnt lgkmcnt(0)")
        for q in range(4):
            a(f"v_lshlrev_b32 v{b+8}, 16, v{b+q}")
            a(f"v_and_b32 v{b+9}, 0xffff0000, v{b+q}")
            a(f"v_lshlrev_b32 v{b+10}, 16, v{b+4+q}")
            a(f"v_and_b32 v{b+11}, 0xffff0000, v{b+4+q}")
            a(f"v_mul_f32 v{b+8}, v{b+8}, v{b+10}")
            a(f"v_mul_f32 v{b+9}, v{b+9}, v{b+11}")
            a(f"v_cvt_pk_bf16_f32 v{b+16+q}, v{b+8}, v{b+9}")
        if not NO_ST: a(f"buffer_store_dwordx4 {vr(b+16,4)}, v{b+20}, s[20:23], s26 offen")
    a.label("gus_done")
    a("s_endpgm")
    return name, NWG, c.NST * stage_bytes(c), 124, 512

def gen_down(a):
    name = "down_kernel"
    head(a, name)
    c = Cfg()
    c.NW, c.WM, c.MT, c.NK, c.TM, c.NST = 4, 4, 2, 1, 128, 4
    c.lda, c.ldb = F * 2, D * 2
    c.vA, c.vB, c.vS, c.vX = 14, 16, 20, 22
    c.fA, c.fW0, c.fW1 = 6, 28, 40
    c.acc = 52
    NWG = 256
    a(f"s_cmp_ge_u32 s2, {NWG}")
    a("s_cbranch_scc1 down_done")
    a("s_load_dwordx2 s[40:41], s[0:1], 48")
    a("s_load_dwordx2 s[44:45], s[0:1], 80")
    g2_ids(a)
    a("s_and_b32 s30, s2, 7")
    a("s_lshl_b32 s30, s30, 5")
    a("s_lshr_b32 s31, s2, 3")
    a("s_add_u32 s30, s30, s31")
    a("s_and_b32 s31, s30, 3")
    a("s_lshr_b32 s32, s30, 6")
    a("s_bfe_u32 s30, s30, 0x40002")
    a("s_waitcnt lgkmcnt(0)")
    srd(a, 8, 44, S * F * 2, WS_H)
    srd(a, 12, 40, F * D * 2)
    srd(a, 20, 44, 4 * S * D * 4, WS_P)
    g2_setup(a, c)
    a(f"s_mul_i32 s26, s30, {128 * F * 2}")
    a("s_mul_i32 s27, s32, 2304")
    a("s_add_u32 s26, s26, s27")
    a(f"s_mul_i32 s27, s32, {1152 * D * 2}")
    a("s_mul_i32 s28, s31, 288")
    a("s_add_u32 s27, s27, s28")
    for r in range(72):
        a(f"v_mov_b32 v{c.acc+r}, 0")
    g2_mainloop(a, c, 36, 'down')
    a("s_nop 15")
    a("s_nop 7")
    a("v_and_b32 v10, 15, v0")
    a("s_lshl_b32 s26, s29, 5")
    a("v_add_u32 v10, s26, v10")
    a("v_mul_u32_u24 v10, 2304, v10")
    a("v_lshrrev_b32 v11, 4, v0")
    a("v_lshl_add_u32 v10, v11, 4, v10")
    a("s_lshl_b32 s26, s32, 11")
    a("s_lshl_b32 s27, s30, 7")
    a("s_add_u32 s26, s26, s27")
    a("s_mul_i32 s26, s26, 2304")
    a("s_mul_i32 s27, s31, 576")
    a("s_add_u32 s26, s26, s27")
    a(f"s_add_u32 s27, s26, {16*2304}")
    for t in range(9):
        for mt in range(2):
            acc = c.acc + 4 * (t * 2 + mt)
            if not NO_ST: a(f"buffer_store_dwordx4 {vr(acc,4)}, v10, s[20:23], s{26+mt} offen offset:{t*64}")
    a("s_or_b32 s26, s31, s32")
    a("s_cmp_lg_u32 s26, 0")
    a("s_cbranch_scc1 down_done")
    a("s_load_dwordx2 s[46:47], s[0:1], 56")
    a("s_load_dwordx2 s[48:49], s[0:1], 0")
    a("s_waitcnt lgkmcnt(0) vmcnt(0)")
    srd(a, 52, 46, D * 2)
    srd(a, 56, 48, S * D * 2)
    srd(a, 60, 44, S * 4, 0x700000)
    GW, XB = 20, 60
    a("v_and_b32 v11, 3, v0")
    a("v_mul_u32_u24 v11, 288, v11")
    for ps in range(2):
        a("v_lshrrev_b32 v10, 2, v0")
        a("s_lshl_b32 s33, s24, 5")
        a("s_lshl_b32 s34, s30, 7")
        a("s_add_u32 s33, s33, s34")
        a(f"s_add_u32 s33, s33, {16*ps}")
        a("v_add_u32 v13, s33, v10")
        a("v_mul_u32_u24 v10, 1152, v13")
        a("v_add_u32 v10, v10, v11")
        a("v_mov_b32 v12, 0")
        for hf in range(2):
            for j in range(9):
                a(f"buffer_load_dwordx4 {vr(GW+4*j,4)}, v11, s[52:55], 0 offen offset:{144*hf + 16*j}")
                a(f"buffer_load_dwordx4 {vr(XB+4*j,4)}, v10, s[56:59], 0 offen offset:{144*hf + 16*j}")
            a("s_waitcnt vmcnt(0)")
            for j in range(36):
                a(f"v_dot2_f32_bf16 v12, v{XB+j}, v{GW+j}, v12")
        a("s_nop 3")
        a("v_add_f32 v12, v12, v12 quad_perm:[1,0,3,2] row_mask:0xf bank_mask:0xf")
        a("s_nop 1")
        a("v_add_f32 v12, v12, v12 quad_perm:[2,3,0,1] row_mask:0xf bank_mask:0xf")
        a("v_cvt_pk_bf16_f32 v12, v12, v12")
        a("v_lshlrev_b32 v12, 16, v12")
        a("v_mul_f32 v12, 0xbfb8aa3b, v12")
        a("v_exp_f32 v12, v12")
        a("s_nop 0")
        a("v_add_f32 v12, 1.0, v12")
        a("v_rcp_f32 v12, v12")
        a("s_nop 0")
        a("v_cvt_pk_bf16_f32 v12, v12, v12")
        a("v_lshlrev_b32 v12, 16, v12")
        a("v_lshlrev_b32 v13, 2, v13")
        a("buffer_store_dword v12, v13, s[60:63], 0 offen")
    a.label("down_done")
    a("s_endpgm")
    return name, NWG, c.NST * stage_bytes(c), 124, 256
```

```python
import sys, math, os
from asmlib import *
from gemm import *
from attn import gen_attn
from final import gen_final
from k2 import gen_gu2, gen_down, gen_gus, gen_qkv2

S, D, H, DH, F = 2048, 576, 32, 18, 4608
WS_QM, WS_QT, WS_KM, WS_KT, WS_VT = 0x0, 0x200000, 0x240000, 0x440000, 0x480000
WS_H, WS_O = 0x800000, 0x1A00000
WS_G = 0x700000
WS_SIZE = 268435456
QSCALE = math.log2(math.e) / math.sqrt(DH)

def f32bits(x):
    import struct
    return struct.unpack("<I", struct.pack("<f", x))[0]

def kernel_head(a, name):
    emit_head(a, name)

def gen_gu(a):
    name = "gu_kernel"
    kernel_head(a, name)
    cfg = GemmCfg()
    cfg.TM, cfg.MT, cfg.NTW, cfg.NSUB = 128, 4, 4, 4
    cfg.lda, cfg.ldb = D * 2, F * 2
    cfg.vA, cfg.vB = 6, 14
    cfg.fA, cfg.fW0, cfg.fW1 = 20, 36, 52
    cfg.acc = 68
    cfg.sub_srd = [12, 12, 16, 16]
    cfg.sub_soff = [27, 28, 27, 28]
    cfg.phases = [[(t, 0, t) for t in range(4)], [(t, 8192, 4 + t) for t in range(4)]]
    cfg.swap = lambda g: True
    cfg.NST = NST = int(os.environ.get('GU_NST', '3'))
    cfg.vBx = 200
    NWG = 16 * 36
    a(f"s_cmp_ge_u32 s2, {NWG}")
    a("s_cbranch_scc1 gu_done")
    a("s_load_dwordx2 s[4:5], s[0:1], 0")
    a("s_load_dwordx4 s[40:43], s[0:1], 32")
    a("s_load_dwordx2 s[44:45], s[0:1], 80")
    gemm_prologue_ids(a, cfg)
    a("s_and_b32 s30, s2, 7")
    a("s_mul_i32 s30, s30, 72")
    a("s_lshr_b32 s31, s2, 3")
    a("s_add_u32 s30, s30, s31")
    a("s_lshr_b32 s31, s30, 4")
    a("s_and_b32 s30, s30, 15")
    a("s_waitcnt lgkmcnt(0)")
    srd(a, 8, 4, S * D * 2)
    srd(a, 12, 40, D * F * 2)
    srd(a, 16, 42, D * F * 2)
    srd(a, 20, 44, S * F * 2, WS_H)
    gemm_setup_addrs(a, cfg)
    setup_regsets(a, cfg)
    a(f"s_mul_i32 s26, s30, {128 * D * 2}")
    a("s_lshl_b32 s27, s31, 8")
    a("s_add_u32 s28, s27, 128")
    emit_zero_acc(a, cfg, 128)
    nsteps = D // 32
    for st in range(NST - 1):
        emit_dma(a, cfg, st); emit_advance(a, cfg)
    nd = ndma(cfg)
    for i in range(nsteps):
        issue = i + NST - 1 < nsteps
        wait = nd * min(NST - 2, nsteps - 1 - i)
        emit_step(a, cfg, i % NST, issue, wait)
    a("s_nop 15")
    a("s_nop 7")
    a("v_and_b32 v10, 15, v0")
    a("s_lshr_b32 s26, s24, 1")
    a("s_lshl_b32 s26, s26, 6")
    a("v_add_u32 v10, s26, v10")
    a(f"s_mov_b32 s26, {F*2}")
    a("v_mul_lo_u32 v10, v10, s26")
    a("v_lshrrev_b32 v11, 4, v0")
    a("v_lshlrev_b32 v11, 3, v11")
    a("s_and_b32 s26, s24, 1")
    a("s_lshl_b32 s26, s26, 7")
    a("v_add3_u32 v10, v10, v11, s26")
    a(f"s_mul_i32 s26, s30, {128 * F * 2}")
    a("s_lshl_b32 s27, s31, 8")
    a("s_add_u32 s26, s26, s27")
    for mt in range(4):
        for t in range(4):
            g = cfg.acc + 4 * (t * 4 + mt)
            u = cfg.acc + 4 * ((4 + t) * 4 + mt)
            tmp = 20 + 8 * ((mt * 4 + t) % 4)
            for p in range(2):
                a(f"v_cvt_pk_bf16_f32 v{tmp+2}, v{g+2*p}, v{g+2*p+1}")
                a(f"v_cvt_pk_bf16_f32 v{tmp+3}, v{u+2*p}, v{u+2*p+1}")
                a(f"v_lshlrev_b32 v{tmp+4}, 16, v{tmp+2}")
                a(f"v_and_b32 v{tmp+5}, 0xffff0000, v{tmp+2}")
                a(f"v_lshlrev_b32 v{tmp+6}, 16, v{tmp+3}")
                a(f"v_and_b32 v{tmp+7}, 0xffff0000, v{tmp+3}")
                a(f"v_mul_f32 v{tmp+4}, v{tmp+4}, v{tmp+6}")
                a(f"v_mul_f32 v{tmp+5}, v{tmp+5}, v{tmp+7}")
                a(f"v_cvt_pk_bf16_f32 v{tmp+p}, v{tmp+4}, v{tmp+5}")
            if not os.environ.get('NO_ST'): a(f"buffer_store_dwordx2 {vr(tmp,2)}, v10, s[20:23], s26 offen offset:{t*32}")
        if mt < 3:
            a(f"s_add_u32 s26, s26, {16 * F * 2}")
    a.label("gu_done")
    a("s_endpgm")
    return name, NWG, NST * stage_bytes(cfg), 220

def gen_qkv(a):
    name = "qkv_kernel"
    kernel_head(a, name)
    cfg = GemmCfg()
    cfg.TM, cfg.MT, cfg.NTW, cfg.NSUB = 128, 4, 6, 3
    cfg.lda, cfg.ldb = D * 2, 3 * D * 2
    cfg.vA, cfg.vB = 6, 14
    cfg.fA, cfg.fW0, cfg.fW1 = 20, 36, 48
    cfg.acc = 60
    cfg.sub_srd = [12, 12, 12]
    cfg.sub_soff = [27, 28, 29]
    cfg.phases = [[(t, 0, t) for t in range(3)], [(t, 0, t) for t in range(3, 6)]]
    NWG = 16 * 9
    cfg.NST = NST = 6
    cfg.vBx = 160
    a(f"s_cmp_ge_u32 s2, {NWG}")
    a("s_cbranch_scc1 qkv_done")
    a("s_load_dwordx4 s[4:7], s[0:1], 0")
    a("s_load_dwordx2 s[44:45], s[0:1], 80")
    gemm_prologue_ids(a, cfg)
    a("s_and_b32 s30, s2, 7")
    a("s_mul_i32 s30, s30, 18")
    a("s_lshr_b32 s31, s2, 3")
    a("s_add_u32 s30, s30, s31")
    a("s_lshr_b32 s31, s30, 4")
    a("s_and_b32 s30, s30, 15")
    a("s_waitcnt lgkmcnt(0)")
    srd(a, 8, 4, S * D * 2)
    srd(a, 12, 6, D * 3 * D * 2)
    srd(a, 20, 44, WS_H)
    gemm_setup_addrs(a, cfg)
    setup_regsets(a, cfg)
    a(f"s_mul_i32 s26, s30, {128 * D * 2}")
    a("s_mul_i32 s27, s31, 384")
    a("s_add_u32 s28, s27, 128")
    a("s_add_u32 s29, s27, 256")
    emit_zero_acc(a, cfg, 96)
    nsteps = D // 32
    nd = ndma(cfg)
    a("s_cmp_ge_u32 s31, 6")
    a("s_cbranch_scc1 qkv_vpath")
    for path in ("qk", "v"):
        if path == "v":
            a.label("qkv_vpath")
        cfg.swap = (lambda g: True) if path == "qk" else (lambda g: False)
        for st in range(NST - 1):
            emit_dma(a, cfg, st); emit_advance(a, cfg)
        for i in range(nsteps):
            emit_step(a, cfg, i % NST, i + NST - 1 < nsteps, nd * min(NST - 2, nsteps - 1 - i))
        a("s_nop 15")
        a("s_nop 7")
        a("s_mul_i32 s26, s31, 171")
        a("s_lshr_b32 s26, s26, 9")
        a("s_mul_i32 s27, s26, 3")
        a("s_sub_u32 s27, s31, s27")
        a("s_mul_i32 s27, s27, 192")
        a("s_and_b32 s28, s24, 1")
        a("s_mul_i32 s28, s28, 96")
        a("s_add_u32 s27, s27, s28")
        a("s_lshr_b32 s28, s24, 1")
        a("s_lshl_b32 s28, s28, 6")
        a("s_lshl_b32 s29, s30, 7")
        a("s_add_u32 s28, s28, s29")
        if path == "qk":
            a(f"s_mul_i32 s26, s26, {WS_KM}")
            a(f"s_mov_b32 s33, {f32bits(QSCALE):#x}")
            a("s_mov_b32 s34, 1.0")
            a("s_cmp_eq_u32 s26, 0")
            a("s_cselect_b32 s33, s33, s34")
            a("s_mov_b32 s34, 3641")
            a("v_and_b32 v10, 15, v0")
            a("v_add_u32 v10, s28, v10")
            a("v_lshrrev_b32 v11, 4, v0")
            a("v_lshlrev_b32 v11, 2, v11")
            a("v_add_u32 v11, s27, v11")
            for t in range(6):
                for ps in range(2):
                    a(f"v_add_u32 v12, {t*16 + ps*2}, v11")
                    a("v_mul_lo_u32 v13, v12, s34")
                    a("v_lshrrev_b32 v13, 16, v13")
                    a("v_mul_u32_u24 v2, 18, v13")
                    a("v_sub_u32 v12, v12, v2")
                    a("v_lshrrev_b32 v2, 3, v12")
                    a("v_lshl_add_u32 v2, v13, 1, v2")
                    a("v_lshlrev_b32 v2, 15, v2")
                    a("v_and_b32 v3, 7, v12")
                    a("v_lshl_add_u32 v2, v3, 1, v2")
                    a("v_lshlrev_b32 v3, 13, v13")
                    a(f"v_add_u32 v3, {WS_QT}, v3")
                    a("v_cmp_lt_u32 vcc, 15, v12")
                    a("v_mov_b32 v4, 4")
                    a("v_mov_b32 v5, 2")
                    a("v_cndmask_b32 v2, v2, v3, vcc")
                    a("v_cndmask_b32 v4, v4, v5, vcc")
                    for mt in range(4):
                        acc = cfg.acc + 4 * (t * 4 + mt) + 2 * ps
                        tmp = 20 + 4 * (mt % 4)
                        a(f"v_mul_f32 v{tmp}, s33, v{acc}")
                        a(f"v_mul_f32 v{tmp+1}, s33, v{acc+1}")
                        a(f"v_cvt_pk_bf16_f32 v{tmp}, v{tmp}, v{tmp+1}")
                        a(f"v_add_u32 v{tmp+2}, {mt*16}, v10")
                        a(f"v_lshlrev_b32 v{tmp+2}, v4, v{tmp+2}")
                        a(f"v_add_u32 v{tmp+2}, v{tmp+2}, v2")
                        a(f"buffer_store_dword v{tmp}, v{tmp+2}, s[20:23], s26 offen")
            a("s_branch qkv_done")
        else:
            a("v_and_b32 v10, 15, v0")
            a("v_add_u32 v10, s27, v10")
            a("v_lshlrev_b32 v10, 12, v10")
            a("v_bfe_u32 v11, v0, 4, 1")
            a("v_lshrrev_b32 v12, 5, v0")
            a("v_lshlrev_b32 v11, 4, v11")
            a("v_lshl_add_u32 v11, v12, 3, v11")
            a("v_add_u32 v10, v10, v11")
            a("s_lshl_b32 s26, s28, 1")
            a(f"s_add_u32 s26, s26, {WS_VT}")
            for t in range(6):
                if t:
                    a(f"v_add_u32 v10, {16*4096}, v10")
                for mt in range(4):
                    acc = cfg.acc + 4 * (t * 4 + mt)
                    tmp = 20 + 2 * ((t * 4 + mt) % 8)
                    a(f"v_cvt_pk_bf16_f32 v{tmp}, v{acc}, v{acc+1}")
                    a(f"v_cvt_pk_bf16_f32 v{tmp+1}, v{acc+2}, v{acc+3}")
                    a(f"buffer_store_dwordx2 {vr(tmp,2)}, v10, s[20:23], s26 offen offset:{mt*32}")
    a.label("qkv_done")
    a("s_endpgm")
    return name, NWG, NST * stage_bytes(cfg), 180

def merged(name, ga, gb, narrowA):
    def f(a):
        a(f".globl {name}"); a(".p2align 8"); a(f".type {name},@function"); a.label(name)
        tmp = Asm(); NOHEAD[0] = True
        ra = ga(tmp); rb = gb(tmp); NOHEAD[0] = False
        NA = ra[1]
        a(f"s_cmp_lt_u32 s2, {NA}")
        a(f"s_cbranch_scc1 {name}_A")
        a(f"s_sub_u32 s2, s2, {NA}")
        a(f"s_branch {rb[0]}_body")
        a.label(f"{name}_A")
        if narrowA:
            a("v_cmp_lt_u32 vcc, 255, v0")
            a(f"s_cbranch_vccnz {name}_exit")
        a(f"s_branch {ra[0]}_body")
        a.label(f"{name}_exit")
        a("s_endpgm")
        a.lines += tmp.lines
        return name, NA + rb[1], max(ra[2], rb[2]), max(ra[3], rb[3]), 512
    return f

def merged2(name, ga, gb):
    def f(a):
        a(f".globl {name}"); a(".p2align 8"); a(f".type {name},@function"); a.label(name)
        tmp = Asm(); NOHEAD[0] = True
        ra = ga(tmp); rb = gb(tmp); NOHEAD[0] = False
        NA = ra[1]
        a(f"s_cmp_lt_u32 s2, {NA}")
        a(f"s_cbranch_scc1 {name}_A")
        a(f"s_sub_u32 s2, s2, {NA}")
        a("v_cmp_lt_u32 vcc, 255, v0")
        a(f"s_cbranch_vccnz {name}_exit")
        a(f"s_branch {rb[0]}_body")
        a.label(f"{name}_A")
        a(f"s_branch {ra[0]}_body")
        a.label(f"{name}_exit")
        a("s_endpgm")
        a.lines += tmp.lines
        return name, NA + rb[1], max(ra[2], rb[2]), max(ra[3], rb[3]), 512
    return f

def merged3(name, ga, gb):
    def f(a):
        a(f".globl {name}"); a(".p2align 8"); a(f".type {name},@function"); a.label(name)
        tmp = Asm(); NOHEAD[0] = True
        ra = ga(tmp); rb = gb(tmp); NOHEAD[0] = False
        NA = ra[1]
        a(f"s_cmp_lt_u32 s2, {NA}")
        a(f"s_cbranch_scc1 {ra[0]}_body")
        a(f"s_sub_u32 s2, s2, {NA}")
        a(f"s_branch {rb[0]}_body")
        a.lines += tmp.lines
        return name, NA + rb[1], max(ra[2], rb[2]), max(ra[3], rb[3]), 512
    return f

def build(which):
    a = Asm()
    kernels = []
    for g in which:
        kernels.append(g(a))
    hdr = open("gated_mix__mha_block__glu_gated_bilinear__prompt.s.ref").read().split("\n")
    head = [l for l in hdr if l.startswith(";") and "@launch" not in l and "Override launch" not in l and "grid=ceil" not in l]
    out = "\n".join(head) + "\n"
    kernels = [k if len(k) == 5 else (*k, 256) for k in kernels]
    for (name, nwg, lds, vg, blk) in kernels:
        out += f"; @launch kernel={name} grid=({nwg},1,1) block=({blk},1,1) lds={lds}\n"
    out += '.amdgcn_target "amdgcn-amd-amdhsa--gfx950"\n.text\n'
    out += a.text()
    for (name, nwg, lds, vg, blk) in kernels:
        out += kernel_desc(name, vg)
    return out

if __name__ == "__main__":
    if os.environ.get('ALTA'):
        txt = build([gen_qkv, merged3('l1_kernel', gen_attn, gen_gus), gen_down, gen_final])
        open(sys.argv[1], "w").write(txt); sys.exit(0)
    if os.environ.get('SEP'):
        txt = build([gen_gu2, gen_down])
        open(sys.argv[1], "w").write(txt); sys.exit(0)
    txt = build([merged2('l1_kernel', gen_gu2, gen_qkv2), merged2('l2_kernel', gen_attn, gen_down), gen_final])
    open(sys.argv[1] if len(sys.argv) > 1 else "dev.s", "w").write(txt)
```

```python
from asmlib import *
import os
NO_DMA = os.environ.get('NO_DMA')
NO_MFMA = os.environ.get('NO_MFMA')
NO_LDS = os.environ.get('NO_LDS')

class Cfg: pass
_lbl = 0

BSZ = 9216

def g2_ids(a):
    a("v_lshrrev_b32 v1, 6, v0")
    a("s_nop 0")
    a("v_readfirstlane_b32 s24, v1")
    a("v_and_b32 v0, 63, v0")

def stage_bytes(c):
    return c.TM * 64 + c.NK * BSZ

def g2_setup(a, c):
    NW, WM = c.NW, c.WM
    a(f"s_and_b32 s29, s24, {WM-1}")
    a(f"s_lshr_b32 s33, s24, {WM.bit_length()-1}")
    a("s_and_b32 s34, s24, 3")
    a("v_lshrrev_b32 v10, 2, v0")
    a("v_lshrrev_b32 v11, 4, v0")
    a("v_sub_u32 v11, 4, v11")
    a("v_and_b32 v11, 3, v11")
    a("v_and_b32 v12, 3, v0")
    a("v_xor_b32 v12, v12, v11")
    a("s_lshl_b32 s26, s24, 4")
    a("v_add_u32 v10, s26, v10")
    a(f"s_mov_b32 s26, {c.lda}")
    a("v_mul_lo_u32 v10, v10, s26")
    a("v_lshl_add_u32 v2, v12, 4, v10")
    a(f"v_add_u32 v3, {16*NW*c.lda}, v2")
    if os.environ.get('A128'):
        a("v_lshrrev_b32 v10, 3, v0")
        a("s_lshl_b32 s26, s24, 4")
        a("v_add_u32 v10, s26, v10")
        a(f"s_mov_b32 s26, {c.lda}")
        a("v_mul_lo_u32 v10, v10, s26")
        a("v_and_b32 v12, 7, v0")
        a("v_lshl_add_u32 v2, v12, 4, v10")
        a(f"v_add_u32 v3, {8*c.lda}, v2")
    a("v_lshrrev_b32 v10, 3, v0")
    a("v_bfe_u32 v11, v0, 4, 1")
    a("s_and_b32 s26, s34, 1")
    a("s_lshl_b32 s26, s26, 1")
    a("v_or_b32 v11, s26, v11")
    a("v_bfe_u32 v12, v0, 1, 2")
    a("v_xor_b32 v12, v12, v11")
    a("v_and_b32 v13, 1, v0")
    a("v_lshlrev_b32 v13, 4, v13")
    a("v_lshl_add_u32 v13, v12, 5, v13")
    a("s_lshl_b32 s26, s34, 3")
    a("v_add_u32 v10, s26, v10")
    a(f"s_mov_b32 s26, {c.ldb}")
    a("v_mul_lo_u32 v10, v10, s26")
    a("v_add_u32 v4, v10, v13")
    a("v_lshrrev_b32 v10, 1, v0")
    a("s_lshl_b32 s26, s34, 3")
    a("v_add_u32 v10, s26, v10")
    a("s_and_b32 s26, s34, 1")
    a("s_lshl_b32 s26, s26, 2")
    a("v_xor_b32 v10, s26, v10")
    a(f"s_mov_b32 s26, {c.ldb}")
    a("v_mul_lo_u32 v10, v10, s26")
    a("v_and_b32 v11, 1, v0")
    a("v_lshl_add_u32 v10, v11, 4, v10")
    a("v_add_u32 v5, 256, v10")
    a("v_bfe_u32 v10, v0, 2, 2")
    a("v_sub_u32 v10, 4, v10")
    a("v_and_b32 v10, 3, v10")
    a("v_lshrrev_b32 v11, 4, v0")
    a("v_xor_b32 v10, v10, v11")
    a("v_and_b32 v11, 15, v0")
    a(f"s_mul_i32 s26, s29, {c.MT*16}")
    a("v_add_u32 v11, s26, v11")
    a("v_lshlrev_b32 v11, 6, v11")
    a(f"v_lshl_add_u32 v{c.vA}, v10, 4, v11")
    a(f"s_mul_i32 s26, s33, {BSZ}")
    a(f"s_add_u32 s26, s26, {c.TM*64}")
    a("v_lshrrev_b32 v10, 4, v0")
    a("v_bfe_u32 v11, v0, 2, 2")
    a("v_lshl_add_u32 v11, v10, 3, v11")
    a("v_and_b32 v12, 3, v0")
    a("v_lshlrev_b32 v13, 7, v11")
    a("v_lshl_add_u32 v13, v12, 3, v13")
    a("v_add_u32 v13, s26, v13")
    a("v_bfe_u32 v6, v0, 3, 1")
    a("v_and_b32 v7, 1, v10")
    a("v_lshl_or_b32 v6, v7, 1, v6")
    for j in range(4):
        a(f"v_xor_b32 v8, {j}, v6")
        a(f"v_lshl_add_u32 v{c.vB+j}, v8, 5, v13")
    a("v_lshlrev_b32 v13, 5, v11")
    a("v_lshl_add_u32 v13, v12, 3, v13")
    a("v_add_u32 v13, s26, v13")
    a("v_add_u32 v13, 8192, v13")
    a(f"v_lshl_add_u32 v{c.vS}, v7, 7, v13")
    a("v_xor_b32 v7, 1, v7")
    a(f"v_lshl_add_u32 v{c.vS+1}, v7, 7, v13")
    sb = stage_bytes(c)
    c.per_set = max(1, (65536 - 8192) // sb)
    if getattr(c, 'pipe', False): c.per_set = 99
    c.nsets = (c.NST + c.per_set - 1) // c.per_set
    for s in range(1, c.nsets):
        off = s * c.per_set * sb
        a(f"v_add_u32 v{c.vA+s}, {off}, v{c.vA}")
        for t in range(6):
            a(f"v_add_u32 v{c.vX + (s-1)*6 + t}, {off}, v{c.vB+t}")
    a("s_lshl_b32 s25, s24, 10")
    a(f"s_mul_i32 s38, s33, {BSZ}")
    a(f"s_add_u32 s38, s38, {c.TM*64}")
    a("s_lshl_b32 s26, s34, 8")
    a("s_add_u32 s39, s38, s26")
    a("s_add_u32 s39, s39, 8192")
    a("s_lshl_b32 s26, s34, 10")
    a("s_add_u32 s38, s38, s26")

def ndma2(c):
    return 3 + c.TM // 16 // c.NW

def g2_dma(a, c, stage):
    base = stage * stage_bytes(c)
    a(f"s_add_u32 m0, s25, {base}")
    a("s_nop 0")
    if not NO_DMA: a("buffer_load_dwordx4 v2, s[8:11], s26 offen lds")
    if c.TM // 16 // c.NW == 2:
        a(f"s_add_u32 m0, s25, {base + c.NW*1024}")
        a("s_nop 0")
        if not NO_DMA: a("buffer_load_dwordx4 v3, s[8:11], s26 offen lds")
    a(f"s_add_u32 m0, s38, {base}")
    a("s_add_u32 s28, s27, 128")
    if not NO_DMA: a("buffer_load_dwordx4 v4, s[12:15], s27 offen lds")
    a(f"s_add_u32 m0, s38, {base + 4096}")
    a("s_nop 0")
    if not NO_DMA: a("buffer_load_dwordx4 v4, s[12:15], s28 offen lds")
    a(f"s_add_u32 m0, s39, {base}")
    a("s_mov_b64 exec, 0xffff")
    if not NO_DMA: a("buffer_load_dwordx4 v5, s[12:15], s27 offen lds")
    a("s_mov_b64 exec, -1")
    a("s_add_u32 s26, s26, 64")
    a(f"s_add_u32 s27, s27, {32*c.ldb}")

STAMP = os.environ.get('STAMP')
_st = [0]
def stamp(a):
    if not STAMP: return
    a("s_memtime s[98:99]")
    a("s_waitcnt lgkmcnt(0)")
    a(f"v_writelane_b32 v255, s98, {_st[0]}")
    _st[0] += 1

def g2_step(a, c, stage, issue_next, wait_n):
    setj = stage // c.per_set
    base = (stage % c.per_set) * stage_bytes(c)
    vA = c.vA + setj
    def vB(t):
        return (c.vB + t) if setj == 0 else (c.vX + (setj-1)*6 + t)
    MT = c.MT
    a(f"s_waitcnt vmcnt({wait_n})")
    if getattr(c, "stamps", False): stamp(a)
    a("s_barrier")
    for mt in range(MT):
        if not NO_LDS: a(f"ds_read_b128 {vr(c.fA + 4*mt, 4)}, v{vA} offset:{base + mt*1024}")
    def wreads(grp, fb):
        if NO_LDS: return
        for q in range(3):
            t = grp * 3 + q
            for h2 in range(2):
                if t < 8:
                    a(f"ds_read_b64_tr_b16 {vr(fb + 4*q + 2*h2, 2)}, v{vB(t&3)} offset:{base + (t>>2)*4096 + h2*512}")
                else:
                    a(f"ds_read_b64_tr_b16 {vr(fb + 4*q + 2*h2, 2)}, v{vB(4+h2)} offset:{base}")
    def mfmas(grp, fb):
        if NO_MFMA: return
        for q in range(3):
            t = grp * 3 + q
            for mt in range(MT):
                acc = c.acc + 4 * (t * MT + mt)
                a(f"v_mfma_f32_16x16x32_bf16 {vr(acc,4)}, {vr(fb+4*q,4)}, {vr(c.fA+4*mt,4)}, {vr(acc,4)}")
    stag = getattr(c, "stagger", False) and issue_next
    global _lbl
    wreads(0, c.fW0)
    if issue_next:
        if stag:
            _lbl += 1
            a("s_cmp_lt_u32 s24, 4")
            a(f"s_cbranch_scc0 g2skip{_lbl}")
        g2_dma(a, c, (stage + c.NST - 1) % c.NST)
        if stag:
            a.label(f"g2skip{_lbl}")
    a("s_waitcnt lgkmcnt(0)")
    wreads(1, c.fW1)
    mfmas(0, c.fW0)
    a("s_waitcnt lgkmcnt(0)")
    wreads(2, c.fW0)
    mfmas(1, c.fW1)
    a("s_waitcnt lgkmcnt(0)")
    if stag:
        _lbl += 1
        a("s_cmp_lt_u32 s24, 4")
        a(f"s_cbranch_scc1 g2skip{_lbl}")
        g2_dma(a, c, (stage + c.NST - 1) % c.NST)
        a.label(f"g2skip{_lbl}")
    mfmas(2, c.fW0)

def g2_mainloop_unrolled(a, c, nsteps, prefetch=None):
    for st in range(c.NST - 1):
        g2_dma(a, c, st)
    npf = prefetch(a) if prefetch else 0
    for i in range(nsteps):
        extra = npf if i < c.NST - 1 else 0
        g2_step(a, c, i % c.NST, i + c.NST - 1 < nsteps, ndma2(c) * min(c.NST - 2, nsteps - 1 - i) + extra)

def g2_mainloop(a, c, nsteps, tag, prefetch=None):
    N = c.NST
    for st in range(N - 1):
        g2_dma(a, c, st)
    npf = prefetch(a) if prefetch else 0
    full = ndma2(c) * (N - 2)
    nissue = nsteps - (N - 1)
    head = N - 1 if npf else 0
    head += (nissue - head) % N
    iters = (nissue - head) // N
    for i in range(head):
        g2_step(a, c, i % N, True, full + (npf if i < N - 1 else 0))
    a("s_mov_b32 s37, 0")
    a.label(tag + "_loop")
    for j in range(N):
        g2_step(a, c, (head + j) % N, True, full)
    a("s_add_u32 s37, s37, 1")
    a(f"s_cmp_lt_u32 s37, {iters}")
    a(f"s_cbranch_scc1 {tag}_loop")
    for i in range(nissue, nsteps):
        g2_step(a, c, i % N, False, ndma2(c) * (nsteps - 1 - i))

def g3_reads_head(a, c, par):
    for mt in range(c.MT):
        if not NO_LDS: a(f"ds_read_b128 {vr(c.fA2[par] + 4*mt, 4)}, v{c.vA} offset:{mt*1024}")
    g3_wreads(a, c, 0, c.fWp[par])

def g3_wreads(a, c, grp, fb):
    if NO_LDS: return
    for q in range(3):
        t = grp * 3 + q
        for h2 in range(2):
            if t < 8:
                a(f"ds_read_b64_tr_b16 {vr(fb + 4*q + 2*h2, 2)}, v{c.vB + (t&3)} offset:{(t>>2)*4096 + h2*512}")
            else:
                a(f"ds_read_b64_tr_b16 {vr(fb + 4*q + 2*h2, 2)}, v{c.vB + 4 + h2}")

def g3_mfmas(a, c, grp, fb, par):
    if NO_MFMA: return
    for q in range(3):
        t = grp * 3 + q
        for mt in range(c.MT):
            acc = c.acc + 4 * (t * c.MT + mt)
            if getattr(c, "noswap", False):
                a(f"v_mfma_f32_16x16x32_bf16 {vr(acc,4)}, {vr(c.fA2[par]+4*mt,4)}, {vr(fb+4*q,4)}, {vr(acc,4)}")
            else:
                a(f"v_mfma_f32_16x16x32_bf16 {vr(acc,4)}, {vr(fb+4*q,4)}, {vr(c.fA2[par]+4*mt,4)}, {vr(acc,4)}")

def g3_advance(a, c, stage_next):
    sb = stage_bytes(c)
    d = sb if stage_next != 0 else -(c.NST - 1) * sb
    for r in [c.vA] + [c.vB + t for t in range(6)]:
        if d > 0:
            a(f"v_add_u32 v{r}, {d}, v{r}")
        else:
            a(f"v_subrev_u32 v{r}, {-d}, v{r}")

def g3_step(a, c, i, nsteps, par, issue, wait_next):
    N = c.NST
    stage = i % N
    a("s_waitcnt lgkmcnt(0)")
    g3_wreads(a, c, 1, c.fWp[par ^ 1])
    if issue:
        g2_dma(a, c, (stage + N - 1) % N)
    g3_mfmas(a, c, 0, c.fWp[par], par)
    a("s_waitcnt lgkmcnt(0)")
    g3_wreads(a, c, 2, c.fWp[par])
    g3_mfmas(a, c, 1, c.fWp[par ^ 1], par)
    a("s_waitcnt lgkmcnt(0)")
    if wait_next is not None:
        a(f"s_waitcnt vmcnt({wait_next})")
        a("s_barrier")
        g3_advance(a, c, (stage + 1) % N)
        g3_reads_head(a, c, par ^ 1)
    g3_mfmas(a, c, 2, c.fWp[par], par)

def g3_mainloop(a, c, nsteps, tag, prefetch=None):
    N = c.NST
    nd = ndma2(c)
    for st in range(N - 1):
        g2_dma(a, c, st)
    npf = prefetch(a) if prefetch else 0
    def wait_for(j, issued_upto, pf_pending):
        return nd * (issued_upto - j) + (npf if pf_pending else 0)
    a(f"s_waitcnt vmcnt({wait_for(0, N - 2, True)})")
    a("s_barrier")
    g3_reads_head(a, c, 0)
    period = N if N % 2 == 0 else 2 * N
    def emit(i):
        issue = i + N - 1 < nsteps
        upto = min(i + N - 1, nsteps - 1)
        wn = None if i + 1 >= nsteps else wait_for(i + 1, upto, i + 1 < N - 1)
        g3_step(a, c, i, nsteps, i & 1, issue, wn)
    nissue = nsteps - (N - 1)
    head = N - 1
    head += (nissue - head) % period
    iters = (nissue - head) // period
    for i in range(head):
        emit(i)
    if iters > 0:
        a("s_mov_b32 s37, 0")
        a.label(tag + "_loop")
        for j in range(period):
            emit(head + j)
        a("s_add_u32 s37, s37, 1")
        a(f"s_cmp_lt_u32 s37, {iters}")
        a(f"s_cbranch_scc1 {tag}_loop")
    for i in range(head + iters * period, nsteps):
        emit(i)
```

```python
from asmlib import *
from gemm2 import *
import os
NO_ST = os.environ.get('NO_ST')
S, D, H, DH, F = 2048, 576, 32, 18, 4608
WS_H, WS_O, WS_P = 0x800000, 0x1A00000, 0x2000000

def head(a, name):
    emit_head(a, name)

def gen_gu2(a):
    name = "gu_kernel"
    head(a, name)
    c = Cfg()
    c.NW, c.WM, c.MT, c.NK, c.TM, c.NST = 8, 4, 4, 2, 256, 4
    c.pipe = True
    c.fA2 = [60, 30]
    c.fWp = [76, 88]
    c.lda, c.ldb = D * 2, F * 2
    c.vA, c.vB, c.vS, c.vX = 14, 20, 24, 30
    c.fA, c.fW0, c.fW1 = 60, 76, 88
    c.acc = 100
    NWG = 256
    a(f"s_cmp_ge_u32 s2, {NWG}")
    a("s_cbranch_scc1 gu_done")
    a("s_load_dwordx2 s[4:5], s[0:1], 0")
    a("s_load_dwordx4 s[40:43], s[0:1], 32")
    a("s_load_dwordx2 s[44:45], s[0:1], 80")
    a("s_load_dwordx4 s[64:67], s[0:1], 8")
    a("s_load_dwordx2 s[68:69], s[0:1], 48")
    g2_ids(a)
    a("s_and_b32 s30, s2, 7")
    a("s_lshl_b32 s30, s30, 5")
    a("s_lshr_b32 s31, s2, 3")
    a("s_add_u32 s30, s30, s31")
    a("s_lshr_b32 s31, s30, 3")
    a("s_and_b32 s30, s30, 7")
    a("s_waitcnt lgkmcnt(0)")
    srd(a, 8, 4, S * D * 2)
    a("s_cmp_lt_u32 s24, 4")
    a("s_cselect_b32 s12, s40, s42")
    a("s_cselect_b32 s13, s41, s43")
    a(f"s_mov_b32 s14, {D*F*2}")
    a("s_mov_b32 s15, 0x00020000")
    srd(a, 20, 44, S * F * 2, WS_H)
    srd(a, 72, 64, D * 3 * D * 2)
    srd(a, 76, 66, D * D * 2)
    srd(a, 80, 68, F * D * 2)
    g2_setup(a, c)
    a(f"s_mul_i32 s26, s30, {256 * D * 2}")
    a("s_mul_i32 s27, s31, 288")
    for r in range(144):
        a(f"v_mov_b32 v{c.acc+r}, 0")
    def pf(a):
        a("v_lshrrev_b32 v6, 2, v0")
        a("s_and_b32 s46, s24, 3")
        a("s_mul_i32 s46, s46, 18")
        a("v_add_u32 v6, s46, v6")
        a("v_lshlrev_b32 v6, 3, v6")
        a("v_add_u32 v6, s30, v6")
        a(f"s_mov_b32 s46, {F*2}")
        a("v_mul_lo_u32 v6, v6, s46")
        a("v_and_b32 v7, 3, v0")
        a("v_mul_u32_u24 v7, 96, v7")
        a("v_min_u32 v7, 284, v7")
        a("v_add_u32 v6, v6, v7")
        a("s_mul_i32 s46, s31, 288")
        a("buffer_load_dword v8, v6, s[12:15], s46 offen")
        a(f"v_add_u32 v6, {16*8*F*2}, v6")
        a("v_cmp_gt_u32 vcc, 8, v0")
        a("v_mov_b32 v7, 0x7f000000")
        a("s_nop 1")
        a("v_cndmask_b32 v6, v7, v6, vcc")
        a("buffer_load_dword v9, v6, s[12:15], s46 offen")
        return 2
    if STAMP:
        c.stamps = True
        stamp(a)
        g2_mainloop_unrolled(a, c, D // 32, pf)
        stamp(a)
    else:
        g3_mainloop(a, c, D // 32, 'gu', pf)
    a("s_lshl_b32 s46, s2, 3")
    a("s_add_u32 s46, s46, s24")
    a("s_lshl_b32 s46, s46, 6")
    a("v_add_u32 v6, s46, v0")
    a("v_lshlrev_b32 v6, 7, v6")
    a("buffer_load_dword v56, v6, s[72:75], 0 offen")
    a("buffer_load_dword v57, v6, s[76:79], 0 offen")
    a("buffer_load_dword v58, v6, s[80:83], 0 offen")
    a("s_nop 15")
    a("s_nop 7")
    a("s_barrier")
    a("v_and_b32 v10, 15, v0")
    a("s_lshl_b32 s26, s29, 6")
    a("v_add_u32 v10, s26, v10")
    a("v_mul_u32_u24 v10, 304, v10")
    a("v_lshrrev_b32 v11, 4, v0")
    a("v_lshl_add_u32 v10, v11, 3, v10")
    a("s_mul_i32 s26, s33, 77824")
    a("v_add_u32 v10, s26, v10")
    for t in range(9):
        for mt in range(4):
            acc = c.acc + 4 * (t * 4 + mt)
            tmp = 60 + 2 * ((t * 4 + mt) % 8)
            a(f"v_cvt_pk_bf16_f32 v{tmp}, v{acc}, v{acc+1}")
            a(f"v_cvt_pk_bf16_f32 v{tmp+1}, v{acc+2}, v{acc+3}")
            a(f"ds_write_b64 v10, {vr(tmp,2)} offset:{mt*16*304 + t*32}")
    a("s_waitcnt lgkmcnt(0)")
    a("s_barrier")
    a("s_lshl_b32 s26, s24, 6")
    a("v_add_u32 v10, s26, v0")
    a("s_mov_b32 s34, 3641")
    a(f"s_mul_i32 s26, s30, {256 * F * 2}")
    a("s_mul_i32 s27, s31, 288")
    a("s_add_u32 s26, s26, s27")
    a(f"s_mov_b32 s27, {F*2}")
    for it in range(9):
        a(f"v_add_u32 v11, {it*512}, v10")
        a("v_mul_lo_u32 v12, v11, s34")
        a("v_lshrrev_b32 v12, 16, v12")
        a("v_mul_u32_u24 v13, 18, v12")
        a("v_sub_u32 v13, v11, v13")
        a("v_mul_u32_u24 v11, 304, v12")
        a("v_lshl_add_u32 v11, v13, 4, v11")
        a(f"ds_read_b128 {vr(100+8*it,4)}, v11")
        a(f"v_add_u32 v11, 77824, v11")
        a(f"ds_read_b128 {vr(104+8*it,4)}, v11")
        a("v_mul_lo_u32 v12, v12, s27")
        a(f"v_lshl_add_u32 v{180+it}, v13, 4, v12")
    for it in range(9):
        b = 100 + 8 * it
        o = 60 + 4 * it
        a(f"s_waitcnt lgkmcnt({min(15, 2*(8-it))})")
        for q in range(4):
            a(f"v_lshlrev_b32 v20, 16, v{b+q}")
            a(f"v_and_b32 v21, 0xffff0000, v{b+q}")
            a(f"v_lshlrev_b32 v22, 16, v{b+4+q}")
            a(f"v_and_b32 v23, 0xffff0000, v{b+4+q}")
            a(f"v_mul_f32 v20, v20, v22")
            a(f"v_mul_f32 v21, v21, v23")
            a(f"v_cvt_pk_bf16_f32 v{o+q}, v20, v21")
        if not NO_ST: a(f"buffer_store_dwordx4 {vr(o,4)}, v{180+it}, s[20:23], s26 offen")
    if STAMP:
        stamp(a)
        a("s_waitcnt vmcnt(0)")
        stamp(a)
        a("s_cmp_lg_u32 s2, 5")
        a("s_cbranch_scc1 gu_done")
        a("s_cmp_lg_u32 s24, 0")
        a("s_cbranch_scc1 gu_done")
        a("s_load_dwordx2 s[46:47], s[0:1], 72")
        a("s_waitcnt lgkmcnt(0)")
        srd(a, 52, 46, 256)
        a("v_lshlrev_b32 v10, 2, v0")
        a("buffer_store_dword v255, v10, s[52:55], 0 offen")
    a.label("gu_done")
    a("s_endpgm")
    return name, NWG, 155648, 256 if STAMP else 244, 512

def gen_gus(a):
    name = "gus_kernel"
    head(a, name)
    c = Cfg()
    c.NW, c.WM, c.MT, c.NK, c.TM, c.NST = 8, 4, 2, 2, 128, 3
    c.lda, c.ldb = D * 2, F * 2
    c.vA, c.vB, c.vS, c.vX = 14, 16, 20, 22
    c.fA, c.fW0, c.fW1 = 6, 28, 40
    c.acc = 52
    NWG = 512
    a(f"s_cmp_ge_u32 s2, {NWG}")
    a("s_cbranch_scc1 gus_done")
    a("s_load_dwordx2 s[4:5], s[0:1], 0")
    a("s_load_dwordx4 s[40:43], s[0:1], 32")
    a("s_load_dwordx2 s[44:45], s[0:1], 80")
    a("s_load_dwordx4 s[64:67], s[0:1], 8")
    a("s_load_dwordx2 s[68:69], s[0:1], 48")
    g2_ids(a)
    a("s_and_b32 s30, s2, 7")
    a("s_lshl_b32 s30, s30, 6")
    a("s_lshr_b32 s31, s2, 3")
    a("s_add_u32 s30, s30, s31")
    a("s_lshr_b32 s31, s30, 4")
    a("s_and_b32 s30, s30, 15")
    a("s_waitcnt lgkmcnt(0)")
    srd(a, 8, 4, S * D * 2)
    a("s_cmp_lt_u32 s24, 4")
    a("s_cselect_b32 s12, s40, s42")
    a("s_cselect_b32 s13, s41, s43")
    a(f"s_mov_b32 s14, {D*F*2}")
    a("s_mov_b32 s15, 0x00020000")
    srd(a, 20, 44, S * F * 2, WS_H)
    srd(a, 72, 64, D * 3 * D * 2)
    srd(a, 76, 66, D * D * 2)
    srd(a, 80, 68, F * D * 2)
    g2_setup(a, c)
    a(f"s_mul_i32 s26, s30, {128 * D * 2}")
    a("s_mul_i32 s27, s31, 288")
    for r in range(72):
        a(f"v_mov_b32 v{c.acc+r}, 0")
    g2_mainloop(a, c, D // 32, 'gus')
    a("s_nop 15")
    a("s_nop 7")
    a("s_barrier")
    a("v_and_b32 v10, 15, v0")
    a("s_lshl_b32 s26, s29, 5")
    a("v_add_u32 v10, s26, v10")
    a("v_mul_u32_u24 v10, 288, v10")
    a("v_lshrrev_b32 v11, 4, v0")
    a("v_lshl_add_u32 v10, v11, 3, v10")
    a("s_mul_i32 s26, s33, 36864")
    a("v_add_u32 v10, s26, v10")
    for t in range(9):
        for mt in range(2):
            acc = c.acc + 4 * (t * 2 + mt)
            tmp = 28 + 2 * ((t * 2 + mt) % 8)
            a(f"v_cvt_pk_bf16_f32 v{tmp}, v{acc}, v{acc+1}")
            a(f"v_cvt_pk_bf16_f32 v{tmp+1}, v{acc+2}, v{acc+3}")
            a(f"ds_write_b64 v10, {vr(tmp,2)} offset:{mt*16*288 + t*32}")
    a("s_waitcnt lgkmcnt(0)")
    a("s_barrier")
    a("s_lshl_b32 s26, s24, 6")
    a("v_add_u32 v10, s26, v0")
    a("s_mov_b32 s34, 3641")
    a(f"s_mul_i32 s26, s30, {128 * F * 2}")
    a("s_mul_i32 s27, s31, 288")
    a("s_add_u32 s26, s26, s27")
    a(f"s_mov_b32 s27, {F*2}")
    for it in range(5):
        b = 28 + 24 * (it % 3)
        a(f"v_add_u32 v11, {it*512}, v10")
        a("v_mul_lo_u32 v12, v11, s34")
        a("v_lshrrev_b32 v12, 16, v12")
        a("v_mul_u32_u24 v13, 18, v12")
        a("v_sub_u32 v13, v11, v13")
        a("v_lshlrev_b32 v11, 4, v11")
        a(f"ds_read_b128 {vr(b,4)}, v11")
        a(f"v_add_u32 v11, 36864, v11")
        a(f"ds_read_b128 {vr(b+4,4)}, v11")
        a("v_mul_lo_u32 v12, v12, s27")
        a(f"v_lshl_add_u32 v{b+20}, v13, 4, v12")
        if it == 4:
            a("v_cmp_gt_u32 vcc, 256, v10")
            a("v_mov_b32 v12, 0x7f000000")
            a("s_nop 1")
            a(f"v_cndmask_b32 v{b+20}, v12, v{b+20}, vcc")
        a("s_waitcnt lgkmcnt(0)")
        for q in range(4):
            a(f"v_lshlrev_b32 v{b+8}, 16, v{b+q}")
            a(f"v_and_b32 v{b+9}, 0xffff0000, v{b+q}")
            a(f"v_lshlrev_b32 v{b+10}, 16, v{b+4+q}")
            a(f"v_and_b32 v{b+11}, 0xffff0000, v{b+4+q}")
            a(f"v_mul_f32 v{b+8}, v{b+8}, v{b+10}")
            a(f"v_mul_f32 v{b+9}, v{b+9}, v{b+11}")
            a(f"v_cvt_pk_bf16_f32 v{b+16+q}, v{b+8}, v{b+9}")
        if not NO_ST: a(f"buffer_store_dwordx4 {vr(b+16,4)}, v{b+20}, s[20:23], s26 offen")
    a.label("gus_done")
    a("s_endpgm")
    return name, NWG, c.NST * stage_bytes(c), 124, 512

def gen_down(a):
    name = "down_kernel"
    head(a, name)
    c = Cfg()
    c.NW, c.WM, c.MT, c.NK, c.TM, c.NST = 4, 4, 2, 1, 128, 4
    c.lda, c.ldb = F * 2, D * 2
    c.vA, c.vB, c.vS, c.vX = 14, 16, 20, 22
    c.fA, c.fW0, c.fW1 = 6, 28, 40
    c.acc = 54
    c.pipe = True
    c.fA2 = [6, 22]
    c.fWp = [30, 42]
    NWG = 256
    a(f"s_cmp_ge_u32 s2, {NWG}")
    a("s_cbranch_scc1 down_done")
    a("s_load_dwordx2 s[40:41], s[0:1], 48")
    a("s_load_dwordx2 s[44:45], s[0:1], 80")
    g2_ids(a)
    a("s_and_b32 s30, s2, 7")
    a("s_lshl_b32 s30, s30, 5")
    a("s_lshr_b32 s31, s2, 3")
    a("s_add_u32 s30, s30, s31")
    a("s_and_b32 s31, s30, 3")
    a("s_lshr_b32 s32, s30, 6")
    a("s_bfe_u32 s30, s30, 0x40002")
    a("s_waitcnt lgkmcnt(0)")
    srd(a, 8, 44, S * F * 2, WS_H)
    srd(a, 12, 40, F * D * 2)
    srd(a, 20, 44, 4 * S * D * 4, WS_P)
    g2_setup(a, c)
    a(f"s_mul_i32 s26, s30, {128 * F * 2}")
    a("s_mul_i32 s27, s32, 2304")
    a("s_add_u32 s26, s26, s27")
    a(f"s_mul_i32 s27, s32, {1152 * D * 2}")
    a("s_mul_i32 s28, s31, 288")
    a("s_add_u32 s27, s27, s28")
    for r in range(72):
        a(f"v_mov_b32 v{c.acc+r}, 0")
    g3_mainloop(a, c, 36, 'down')
    a("s_nop 15")
    a("s_nop 7")
    a("v_and_b32 v10, 15, v0")
    a("s_lshl_b32 s26, s29, 5")
    a("v_add_u32 v10, s26, v10")
    a("v_mul_u32_u24 v10, 2304, v10")
    a("v_lshrrev_b32 v11, 4, v0")
    a("v_lshl_add_u32 v10, v11, 4, v10")
    a("s_lshl_b32 s26, s32, 11")
    a("s_lshl_b32 s27, s30, 7")
    a("s_add_u32 s26, s26, s27")
    a("s_mul_i32 s26, s26, 2304")
    a("s_mul_i32 s27, s31, 576")
    a("s_add_u32 s26, s26, s27")
    a(f"s_add_u32 s27, s26, {16*2304}")
    for t in range(9):
        for mt in range(2):
            acc = c.acc + 4 * (t * 2 + mt)
            if not NO_ST: a(f"buffer_store_dwordx4 {vr(acc,4)}, v10, s[20:23], s{26+mt} offen offset:{t*64}")
    a("s_or_b32 s26, s31, s32")
    a("s_cmp_lg_u32 s26, 0")
    a("s_cbranch_scc1 down_done")
    a("s_load_dwordx2 s[46:47], s[0:1], 56")
    a("s_load_dwordx2 s[48:49], s[0:1], 0")
    a("s_waitcnt lgkmcnt(0) vmcnt(0)")
    srd(a, 52, 46, D * 2)
    srd(a, 56, 48, S * D * 2)
    srd(a, 60, 44, S * 4, 0x700000)
    GW, XB = 20, 60
    a("v_and_b32 v11, 3, v0")
    a("v_mul_u32_u24 v11, 288, v11")
    for ps in range(2):
        a("v_lshrrev_b32 v10, 2, v0")
        a("s_lshl_b32 s33, s24, 5")
        a("s_lshl_b32 s34, s30, 7")
        a("s_add_u32 s33, s33, s34")
        a(f"s_add_u32 s33, s33, {16*ps}")
        a("v_add_u32 v13, s33, v10")
        a("v_mul_u32_u24 v10, 1152, v13")
        a("v_add_u32 v10, v10, v11")
        a("v_mov_b32 v12, 0")
        for hf in range(2):
            for j in range(9):
                a(f"buffer_load_dwordx4 {vr(GW+4*j,4)}, v11, s[52:55], 0 offen offset:{144*hf + 16*j}")
                a(f"buffer_load_dwordx4 {vr(XB+4*j,4)}, v10, s[56:59], 0 offen offset:{144*hf + 16*j}")
            a("s_waitcnt vmcnt(0)")
            for j in range(36):
                a(f"v_dot2_f32_bf16 v12, v{XB+j}, v{GW+j}, v12")
        a("s_nop 3")
        a("v_add_f32 v12, v12, v12 quad_perm:[1,0,3,2] row_mask:0xf bank_mask:0xf")
        a("s_nop 1")
        a("v_add_f32 v12, v12, v12 quad_perm:[2,3,0,1] row_mask:0xf bank_mask:0xf")
        a("v_cvt_pk_bf16_f32 v12, v12, v12")
        a("v_lshlrev_b32 v12, 16, v12")
        a("v_mul_f32 v12, 0xbfb8aa3b, v12")
        a("v_exp_f32 v12, v12")
        a("s_nop 0")
        a("v_add_f32 v12, 1.0, v12")
        a("v_rcp_f32 v12, v12")
        a("s_nop 0")
        a("v_cvt_pk_bf16_f32 v12, v12, v12")
        a("v_lshlrev_b32 v12, 16, v12")
        a("v_lshlrev_b32 v13, 2, v13")
        a("buffer_store_dword v12, v13, s[60:63], 0 offen")
    a.label("down_done")
    a("s_endpgm")
    return name, NWG, c.NST * stage_bytes(c), 126, 256

import math, struct
WS_QM, WS_QT, WS_KM, WS_KT, WS_VT = 0x0, 0x200000, 0x240000, 0x440000, 0x480000
QSCALE = math.log2(math.e) / math.sqrt(DH)
def f32bits(x):
    return struct.unpack("<I", struct.pack("<f", x))[0]

def gen_qkv2(a):
    name = "qkv_kernel"
    head(a, name)
    c = Cfg()
    c.NW, c.WM, c.MT, c.NK, c.TM, c.NST = 4, 4, 2, 1, 128, 6
    c.lda, c.ldb = D * 2, 3 * D * 2
    c.vA, c.vB, c.vS, c.vX = 14, 16, 20, 22
    c.acc = 54
    c.pipe = True
    c.fA2 = [6, 22]
    c.fWp = [30, 42]
    NWG = 16 * 12
    a(f"s_cmp_ge_u32 s2, {NWG}")
    a("s_cbranch_scc1 qkv_done")
    a("s_load_dwordx4 s[4:7], s[0:1], 0")
    a("s_load_dwordx2 s[44:45], s[0:1], 80")
    g2_ids(a)
    a("s_and_b32 s30, s2, 7")
    a("s_mul_i32 s30, s30, 24")
    a("s_lshr_b32 s31, s2, 3")
    a("s_add_u32 s30, s30, s31")
    a("s_lshr_b32 s31, s30, 4")
    a("s_and_b32 s30, s30, 15")
    a("s_waitcnt lgkmcnt(0)")
    srd(a, 8, 4, S * D * 2)
    srd(a, 12, 6, D * 3 * D * 2)
    srd(a, 20, 44, WS_H)
    g2_setup(a, c)
    a(f"s_mul_i32 s26, s30, {128 * D * 2}")
    a("s_mul_i32 s27, s31, 288")
    for r in range(72):
        a(f"v_mov_b32 v{c.acc+r}, 0")
    a("s_cmp_ge_u32 s31, 8")
    a("s_cbranch_scc1 qkv_vpath")
    for path in ("qk", "v"):
        if path == "v":
            a.label("qkv_vpath")
        c.noswap = (path == "v")
        g3_mainloop(a, c, D // 32, "qkv" + path)
        a("s_nop 15")
        a("s_nop 7")
        a("s_lshr_b32 s26, s31, 2")
        a("s_and_b32 s27, s31, 3")
        a("s_mul_i32 s27, s27, 144")
        a("s_lshl_b32 s28, s29, 5")
        a("s_lshl_b32 s33, s30, 7")
        a("s_add_u32 s28, s28, s33")
        if path == "qk":
            a(f"s_mul_i32 s26, s26, {WS_KM}")
            a(f"s_mov_b32 s33, {f32bits(QSCALE):#x}")
            a("s_mov_b32 s34, 1.0")
            a("s_cmp_eq_u32 s26, 0")
            a("s_cselect_b32 s33, s33, s34")
            a("s_mov_b32 s34, 3641")
            a("v_and_b32 v10, 15, v0")
            a("v_add_u32 v10, s28, v10")
            a("v_lshrrev_b32 v11, 4, v0")
            a("v_lshlrev_b32 v11, 2, v11")
            a("v_add_u32 v11, s27, v11")
            for t in range(9):
                for ps in range(2):
                    a(f"v_add_u32 v12, {t*16 + ps*2}, v11")
                    a("v_mul_lo_u32 v13, v12, s34")
                    a("v_lshrrev_b32 v13, 16, v13")
                    a("v_mul_u32_u24 v2, 18, v13")
                    a("v_sub_u32 v12, v12, v2")
                    a("v_lshrrev_b32 v2, 3, v12")
                    a("v_lshl_add_u32 v2, v13, 1, v2")
                    a("v_lshlrev_b32 v2, 15, v2")
                    a("v_and_b32 v3, 7, v12")
                    a("v_lshl_add_u32 v2, v3, 1, v2")
                    a("v_lshlrev_b32 v3, 13, v13")
                    a(f"v_add_u32 v3, {WS_QT}, v3")
                    a("v_cmp_lt_u32 vcc, 15, v12")
                    a("v_mov_b32 v4, 4")
                    a("v_mov_b32 v5, 2")
                    a("v_cndmask_b32 v2, v2, v3, vcc")
                    a("v_cndmask_b32 v4, v4, v5, vcc")
                    for mt in range(2):
                        acc = c.acc + 4 * (t * 2 + mt) + 2 * ps
                        tmp = 20 + 4 * ((t * 4 + ps * 2 + mt) % 6)
                        a(f"v_mul_f32 v{tmp}, s33, v{acc}")
                        a(f"v_mul_f32 v{tmp+1}, s33, v{acc+1}")
                        a(f"v_cvt_pk_bf16_f32 v{tmp}, v{tmp}, v{tmp+1}")
                        a(f"v_add_u32 v{tmp+2}, {mt*16}, v10")
                        a(f"v_lshlrev_b32 v{tmp+2}, v4, v{tmp+2}")
                        a(f"v_add_u32 v{tmp+2}, v{tmp+2}, v2")
                        a(f"buffer_store_dword v{tmp}, v{tmp+2}, s[20:23], s26 offen")
            a("s_branch qkv_done")
        else:
            a("v_and_b32 v10, 15, v0")
            a("v_add_u32 v10, s27, v10")
            a("v_lshlrev_b32 v10, 12, v10")
            a("v_bfe_u32 v11, v0, 4, 1")
            a("v_lshrrev_b32 v12, 5, v0")
            a("v_lshlrev_b32 v11, 4, v11")
            a("v_lshl_add_u32 v11, v12, 3, v11")
            a("v_add_u32 v10, v10, v11")
            a("s_lshl_b32 s26, s28, 1")
            a(f"s_add_u32 s26, s26, {WS_VT}")
            for t in range(9):
                if t:
                    a(f"v_add_u32 v10, {16*4096}, v10")
                for mt in range(2):
                    acc = c.acc + 4 * (t * 2 + mt)
                    tmp = 20 + 2 * ((t * 2 + mt) % 8)
                    a(f"v_cvt_pk_bf16_f32 v{tmp}, v{acc}, v{acc+1}")
                    a(f"v_cvt_pk_bf16_f32 v{tmp+1}, v{acc+2}, v{acc+3}")
                    a(f"buffer_store_dwordx2 {vr(tmp,2)}, v10, s[20:23], s26 offen offset:{mt*32}")
    a.label("qkv_done")
    a("s_endpgm")
    return name, NWG, c.NST * stage_bytes(c), 126, 256
```
